```python
import torch

def _softmax(x, axis=-1):
    return torch.softmax(x, dim=axis)
def _gelu(x):
    return torch.nn.functional.gelu(x, approximate="tanh")
def _silu(x):
    return torch.nn.functional.silu(x)
def _sigmoid(x):
    return torch.sigmoid(x)
def _layernorm(x, axis=-1, eps=1e-5):
    m = x.mean(dim=axis, keepdim=True)
    v = x.var(dim=axis, keepdim=True, unbiased=False)
    return (x - m) / torch.sqrt(v + eps)
def _scatter_add(tgt, idx, src, axis=0):
    return tgt.clone().index_add_(axis, idx, src)
def _segment_sum(src, seg, n):
    out = torch.zeros((n,) + src.shape[1:], dtype=src.dtype)
    return out.index_add_(0, seg, src)
def _pad(x, pw):
    flat = tuple(v for pair in reversed(pw) for v in pair)
    return torch.nn.functional.pad(x, flat)

kernel_name = 'recurrent_scan__mha_block_cached__geglu_ffn__decode'

def setup_inputs():

    _w = (lambda a: (lambda t: t.to(torch.bfloat16) if t.is_floating_point() else t)(torch.as_tensor(a)))
    def _A_setup():
        B, Sq, D = 4, 1, 640
        H, Sk, Dh = 32, 8192, 192
        return {
            "x": _w((lambda *s: torch.randn(*s, dtype=torch.bfloat16) * 0.05)(B, Sq, D)),
            "k_cache": _w((lambda *s: torch.randn(*s, dtype=torch.bfloat16) * 1.6)(B, H, Sk, Dh)),
            "v_cache": _w((lambda *s: torch.randn(*s, dtype=torch.bfloat16) * 0.2)(B, H, Sk, Dh)),
            "wq": _w((lambda *s: torch.randn(*s, dtype=torch.bfloat16) * 1.6)(D, H * Dh) * (D ** -0.5)),
            "wo": _w((lambda *s: torch.randn(*s, dtype=torch.bfloat16) * 0.2)(H * Dh, D) * ((H * Dh) ** -0.5)),
        }
    _A_in = _A_setup()

    def _B_setup():
        B, S, D, F = 4, 1, 640, 1536
        return {
            "x": _w((lambda *s: torch.randn(*s, dtype=torch.bfloat16) * 0.05)(B, S, D)),
            "w_gate": _w((lambda *s: torch.randn(*s, dtype=torch.bfloat16) * 0.1)(D, F)),
            "w_up": _w((lambda *s: torch.randn(*s, dtype=torch.bfloat16) * 0.1)(D, F)),
            "w_down": _w((lambda *s: torch.randn(*s, dtype=torch.bfloat16) * 0.1)(F, D)),
        }
    _B_in = _B_setup()

    return {
        "A_x": _A_in["x"],
        "A_k_cache": _A_in["k_cache"],
        "A_v_cache": _A_in["v_cache"],
        "A_wq": _A_in["wq"],
        "A_wo": _A_in["wo"],
        "B_x": _B_in["x"],
        "B_w_gate": _B_in["w_gate"],
        "B_w_up": _B_in["w_up"],
        "B_w_down": _B_in["w_down"],
    }

def reference(A_x, A_k_cache, A_v_cache, A_wq, A_wo, B_x, B_w_gate, B_w_up, B_w_down):
    def _A_ref(x, k_cache, v_cache, wq, wo):
        B, Sq, D = x.shape
        H, Dh = 32, 192
        q = (lambda x, *d: x.permute(*d))((x @ wq).reshape(B, Sq, H, Dh), 0, 2, 1, 3)
        scores = torch.einsum("bhqd,bhkd->bhqk", q, k_cache) * (Dh ** -0.5)
        p = _softmax(scores, axis=-1)
        o = torch.einsum("bhqk,bhkd->bhqd", p, v_cache)
        return (lambda x, *d: x.permute(*d))(o, 0, 2, 1, 3).reshape(B, Sq, H * Dh) @ wo

    def _B_ref(x, w_gate, w_up, w_down):
        return (_gelu(x @ w_gate) * (x @ w_up)) @ w_down

    x = A_x
    xn = _layernorm(x, axis=-1)
    s = _A_ref(xn, A_k_cache, A_v_cache, A_wq, A_wo)
    g = _silu(_B_ref(xn, B_w_gate, B_w_up, B_w_down))
    return x + s * g
```

```python
import re

class Asm:
    def __init__(self):
        self.lines = []
    def __call__(self, s):
        for ln in s.split('\n'):
            ln = ln.strip()
            if ln:
                self.lines.append(ln)
    def label(self, name):
        self.lines.append(name + ':')
    def comment(self, s):
        self.lines.append('; ' + s)
    def raw(self, s):
        self.lines.append('@RAW ' + s)

TRANS = ('v_exp_f32', 'v_log_f32', 'v_rcp_f32', 'v_rsq_f32', 'v_sqrt_f32', 'v_sin_f32', 'v_cos_f32', 'v_rcp_iflag_f32')

def parse_regs(tok):
    tok = tok.strip()
    neg = tok.lstrip('-')
    if neg.startswith('abs(') and neg.endswith(')'):
        neg = neg[4:-1]
    if neg.startswith('|') and neg.endswith('|'):
        neg = neg[1:-1]
    m = re.fullmatch(r'([vs])(\d+)', neg)
    if m:
        return [(m.group(1), int(m.group(2)))]
    m = re.fullmatch(r'([vs])\[(\d+):(\d+)\]', neg)
    if m:
        return [(m.group(1), i) for i in range(int(m.group(2)), int(m.group(3)) + 1)]
    if neg in ('vcc', 'vcc_lo', 'vcc_hi'):
        return [('s', 'vcc')]
    if neg in ('exec', 'exec_lo', 'exec_hi'):
        return [('s', 'exec')]
    if neg == 'm0':
        return [('s', 'm0')]
    return []

def split_ops(rest):
    ops = []
    depth = 0
    cur = ''
    for ch in rest:
        if ch in '[(':
            depth += 1
        if ch in '])':
            depth -= 1
        if ch == ',' and depth == 0:
            ops.append(cur.strip()); cur = ''
        else:
            cur += ch
    if cur.strip():
        ops.append(cur.strip())
    mods = ''
    if ops:
        last = ops[-1].split()
        ops[-1] = last[0]
        mods = ' '.join(last[1:])
    return ops, mods

class Ins:
    pass

def analyze(line):
    parts = line.split(None, 1)
    op = parts[0]
    rest = parts[1] if len(parts) > 1 else ''
    ops, mods = split_ops(rest)
    I = Ins()
    I.op = op; I.text = line; I.mods = mods
    I.vr = set(); I.vw = set(); I.sr = set(); I.sw = set()
    I.kind = 'other'
    base = op
    for suf in ('_e32', '_e64', '_dpp', '_sdwa'):
        if base.endswith(suf):
            base = base[:-len(suf)]
    I.base = base
    I.dpp = op.endswith('_dpp') or 'quad_perm' in mods or 'row_' in mods
    def add(regs, vset, sset):
        for (t, i) in regs:
            (vset if t == 'v' else sset).add(i)
    R = [parse_regs(o) for o in ops]
    if op.startswith('v_mfma'):
        I.kind = 'mfma'
        add(R[0], I.vw, I.sw)
        for r in R[1:]: add(r, I.vr, I.sr)
        I.srcC = set(i for (t, i) in R[3] if t == 'v')
        I.srcAB = set(i for (t, i) in R[1] + R[2] if t == 'v')
        I.passes = 4 if '16x16x32' in op or '16x16x16' in op else 8
    elif op.startswith('v_cmp'):
        I.kind = 'valu'
        add(R[0], I.vw, I.sw)
        for r in R[1:]: add(r, I.vr, I.sr)
    elif base in ('v_readlane_b32', 'v_readfirstlane_b32'):
        I.kind = 'valu'; I.readlane = True
        add(R[0], I.vw, I.sw)
        for r in R[1:]: add(r, I.vr, I.sr)
    elif op.startswith('v_'):
        I.kind = 'valu'
        add(R[0], I.vw, I.sw)
        srcs = R[1:]
        if base in ('v_add_co_u32', 'v_sub_co_u32', 'v_addc_co_u32', 'v_subb_co_u32', 'v_subrev_co_u32', 'v_div_scale_f32', 'v_mad_u64_u32'):
            add(R[1], I.vw, I.sw); srcs = R[2:]
        for r in srcs: add(r, I.vr, I.sr)
        if base in ('v_fmac_f32', 'v_dot2c_f32_bf16', 'v_pk_fmac_f16', 'v_writelane_b32', 'v_fmaak_f32_x'):
            add(R[0], I.vr, I.sr)
        if base.startswith('v_permlane') and 'swap' in base:
            add(R[0], I.vr, I.sr); add(R[1], I.vw, I.sw)
        if base == 'v_cndmask_b32' and len(ops) == 3:
            I.sr.add('vcc')
        if I.dpp:
            add(R[0], I.vr, I.sr)
        if base == 'v_div_fmas_f32':
            I.sr.add('vcc')
        if base.startswith('v_dot2'):
            I.dot = True
            if base == 'v_dot2_f32_bf16':
                I.srcC = set(i for (t, i) in R[3] if t == 'v')
                I.srcAB = set(i for (t, i) in R[1] + R[2] if t == 'v')
            else:
                I.srcC = set(i for (t, i) in R[0] if t == 'v')
                I.srcAB = set(i for (t, i) in R[1] + R[2] if t == 'v')
    elif op.startswith('ds_'):
        I.kind = 'ds'
        if op.startswith('ds_read') or '_rtn_' in op or op.startswith('ds_bpermute') or op.startswith('ds_permute') or op.startswith('ds_swizzle'):
            add(R[0], I.vw, I.sw)
            for r in R[1:]: add(r, I.vr, I.sr)
        else:
            for r in R: add(r, I.vr, I.sr)
    elif op.startswith('global_') or op.startswith('buffer_') or op.startswith('flat_'):
        I.kind = 'vmem'
        isload = '_load' in op and ' lds' not in (' ' + mods) and '_lds_' not in op
        isatomic = '_atomic' in op
        if op in ('buffer_wbl2', 'buffer_inv'):
            pass
        elif isload or (isatomic and 'sc0' in mods.split()):
            add(R[0], I.vw, I.sw)
            for r in R[1:]: add(r, I.vr, I.sr)
        else:
            for r in R: add(r, I.vr, I.sr)
            if '_store' in op and ('x3' in op or 'x4' in op):
                if op.startswith('global_'):
                    I.widestore = set(i for (t, i) in R[1] if t == 'v')
                else:
                    I.widestore = set(i for (t, i) in R[0] if t == 'v')
    elif op.startswith('s_'):
        I.kind = 'salu'
        if op in ('s_cbranch_scc0', 's_cbranch_scc1', 's_cbranch_vccz', 's_cbranch_vccnz', 's_cbranch_execz', 's_cbranch_execnz', 's_branch', 's_endpgm', 's_setpc_b64', 's_swappc_b64'):
            I.kind = 'branch'
        elif op.startswith('s_cmp') or op in ('s_waitcnt', 's_nop', 's_barrier', 's_sleep', 's_setprio'):
            for r in R: add(r, I.vr, I.sr)
        else:
            if R: add(R[0], I.vw, I.sw)
            for r in R[1:]: add(r, I.vr, I.sr)
    return I

def nop_states(I):
    if I.op == 's_nop':
        return int(I.text.split()[1], 0) + 1
    return 1

def insert_nops(lines, verbose=False):
    out = []
    hist = []
    pos = 0
    def pending_need(I):
        need = 0
        for (P, ppos) in reversed(hist):
            dist = pos - ppos - nop_states(P)
            if dist >= 20: break
            req = 0
            pk = P.kind
            if I is None:
                if pk == 'mfma': req = 8 if P.passes == 4 else 12
                elif pk == 'valu':
                    req = 2 if P.vw else 0
                    if getattr(P, 'dot', False): req = 3
                    if P.sw: req = 5
                elif hasattr(P, 'widestore'): req = 2
            else:
                touched_r = I.vr; touched_w = I.vw
                if pk == 'mfma':
                    full = 8 if P.passes == 4 else 12
                    if I.kind == 'mfma':
                        ov_c = P.vw & I.srcC
                        if ov_c and not (P.vw == I.srcC and P.passes == I.passes): req = max(req, full - 2)
                        if P.vw & I.srcAB: req = max(req, full)
                        if P.vw & I.vw and not ov_c: req = max(req, full)
                    elif I.kind in ('valu', 'ds', 'vmem'):
                        if P.vw & (touched_r | touched_w): req = max(req, full)
                        if I.kind == 'valu' and (P.srcC & touched_w): req = max(req, 3 if P.passes == 4 else 7)
                elif pk == 'valu':
                    if I.kind == 'mfma' and (P.vw & touched_r): req = max(req, 2)
                    if I.kind == 'valu':
                        if I.dpp and (P.vw & touched_r): req = max(req, 2)
                        if I.base.startswith('v_permlane') and (P.vw & (touched_r | touched_w)): req = max(req, 2)
                        if getattr(I, 'readlane', False) and (P.vw & touched_r): req = max(req, 1)
                        if P.base in TRANS and I.base not in TRANS and (P.vw & touched_r): req = max(req, 1)
                        if P.sw & I.sr:
                            req = max(req, 4 if getattr(I, 'readlane', False) or I.base == 'v_writelane_b32' or I.base == 'v_div_fmas_f32' else 2)
                    if getattr(P, 'dot', False):
                        if I.kind in ('valu', 'mfma', 'ds', 'vmem'):
                            same = getattr(I, 'dot', False) and I.base == P.base
                            if same:
                                if P.vw & I.srcAB: req = max(req, 3)
                            elif P.vw & (touched_r | touched_w): req = max(req, 3)
                    if P.base in TRANS and I.kind in ('mfma', 'ds', 'vmem') and (P.vw & touched_r): req = max(req, 2 if I.kind == 'mfma' else 1)
                    if I.kind == 'vmem' and (P.sw & I.sr): req = max(req, 5)
                    if I.kind == 'ds' and (P.sw & I.sr): req = max(req, 5)
                elif pk == 'vmem' and hasattr(P, 'widestore'):
                    if P.widestore & touched_w:
                        req = max(req, 2 if I.kind == 'valu' else 1)
                elif pk == 'salu':
                    if 'm0' in P.sw and I.kind in ('vmem', 'ds'): req = max(req, 1)
            need = max(need, req - dist)
        return need
    def emit_nop(n):
        nonlocal pos
        while n > 0:
            k = min(n, 16)
            t = f's_nop {k-1}'
            out.append('  ' + t)
            J = analyze(t)
            hist.append((J, pos)); pos += k
            n -= k
    for ln in lines:
        if ln.startswith('@RAW '):
            out.append(ln[5:]); continue
        if ln.startswith(';'):
            out.append('  ' + ln); continue
        if ln.endswith(':') and ' ' not in ln:
            n = pending_need(None)
            if n > 0: emit_nop(n)
            out.append(ln)
            continue
        if ln.startswith('.'):
            out.append(ln); continue
        I = analyze(ln)
        if I.kind == 'branch':
            n = pending_need(None)
        else:
            n = pending_need(I)
        if n > 0: emit_nop(n)
        out.append('  ' + ln)
        hist.append((I, pos)); pos += nop_states(I)
        if len(hist) > 64: hist.pop(0)
    return out
```

```python
import sys, argparse, struct
from asmlib import Asm, insert_nops

KN = 'recurrent_scan__mha_block_cached__geglu_ffn__decode_kernel'

def f2u(x):
    return struct.unpack('<I', struct.pack('<f', x))[0]

NWG = 256
W = 8
KVBYTES = 402653184
WS_QP  = 0x400000
WS_RO  = 0x500000
WS_RM  = 0x5E0000
WS_Y   = 0x600000
WS_YF  = 0x900000
WS_CNT = 0xA00000
L_XD   = 0
L_Q    = 10240
L_HD   = 11776
L_ON   = 12800
L_RED  = 13312
L_SLOT = 22528
SLOT_SZ = 1600
L_TMP  = L_SLOT + 32 * SLOT_SZ
LDS_SIZE = L_TMP + 32768

S_WG = 's2'
P_X, P_K, P_V, P_WQ, P_WO, P_BX, P_WG, P_WU, P_WD, P_OUT, P_DBG, P_WS = [(16 + 2 * i) for i in range(12)]
def sp(p): return f's[{p}:{p+1}]'
S_H, S_J, S_WAVE = 's40', 's41', 's42'
S_SEL_LO, S_SEL_HI = 's68', 's69'
S_HIMASK = 's70'
V_TID, V_LANE = 0, 1
V_MASK = 9

class Gen:
    def __init__(self, cfg):
        self.cfg = cfg
        self.a = Asm()
        self.uid = 0
    def lab(self, base):
        self.uid += 1
        return f'L_{base}_{self.uid}'

    def prologue(self, name, nwg):
        a = self.a
        a.raw(f'.globl {name}')
        a.raw('.p2align 8')
        a.raw(f'.type {name},@function')
        a.raw(f'{name}:')
        self.exit_label = self.lab('exit')
        a(f's_cmp_ge_u32 s2, {nwg}')
        a(f's_cbranch_scc1 {self.exit_label}')
        a('s_load_dwordx16 s[16:31], s[0:1], 0')
        a('s_load_dwordx8 s[32:39], s[0:1], 64')
        a(f'v_and_b32 v{V_LANE}, 63, v0')
        a('v_lshrrev_b32 v2, 6, v0')
        a(f'v_readfirstlane_b32 {S_WAVE}, v2')
        a(f's_lshr_b32 {S_H}, s2, 3')
        a(f's_and_b32 {S_J}, s2, 7')
        a(f's_mov_b32 {S_SEL_LO}, 0x01000100')
        a(f's_mov_b32 {S_SEL_HI}, 0x03020302')
        a(f's_mov_b32 {S_HIMASK}, 0xffff0000')
        L = V_LANE
        a(f'v_and_b32 v2, 1, v{L}')
        a('v_cmp_eq_u32 vcc, 1, v2')
        a('v_mov_b32 v3, 0xffff')
        a(f'v_mov_b32 v4, {S_HIMASK}')
        a('v_cndmask_b32 v3, v3, v4, vcc')
        a(f'v_bfe_u32 v2, v{L}, 1, 2')
        for r in range(4):
            a(f'v_cmp_eq_u32 vcc, {r}, v2')
            a(f'v_cndmask_b32 v{V_MASK+r}, 0, v3, vcc')
        a('s_waitcnt lgkmcnt(0)')

    def epilogue(self):
        a = self.a
        a.label(self.exit_label)
        a('s_endpgm')

    def allreduce16(self, op, v):
        a = self.a
        for m in ('quad_perm:[1,0,3,2]', 'quad_perm:[2,3,0,1]', 'row_half_mirror', 'row_mirror'):
            a(f'{op}_dpp v{v}, v{v}, v{v} {m} row_mask:0xf bank_mask:0xf')
    def cross_rows(self, op, v):
        a = self.a
        for i in range(4):
            a(f'v_readlane_b32 s{58+i}, v{v}, {16*i}')
        a(f'v_mov_b32 v{v}, s58')
        for i in range(1, 4):
            a(f'{op} v{v}, s{58+i}, v{v}')
    def wave_sum(self, v):
        self.allreduce16('v_add_f32', v)
        self.cross_rows('v_add_f32', v)
    def round_bf16(self, v):
        a = self.a
        a(f'v_cvt_pk_bf16_f32 v{v}, v{v}, v{v}')
        a(f'v_and_b32 v{v}, {S_HIMASK}, v{v}')
    def fdiv(self, d, n, den, t0, t1):
        a = self.a
        a(f'v_rcp_f32 v{t0}, v{den}')
        a(f'v_mul_f32 v{t1}, v{n}, v{t0}')
        a(f'v_fma_f32 v{d}, -v{t1}, v{den}, v{n}')
        a(f'v_fma_f32 v{d}, v{d}, v{t0}, v{t1}')

    def ln_issue(self, vx):
        a = self.a
        a(f's_mul_i32 s3, {S_WAVE}, 1280')
        a(f'v_lshlrev_b32 v2, 2, v{V_LANE}')
        a('v_add_u32 v2, s3, v2')
        for k in range(5):
            a(f'global_load_dword v{vx+k}, v2, {sp(P_X)} offset:{256*k}')
    def ln_compute(self, vx, vt):
        a = self.a
        f = [vt + i for i in range(10)]
        t0, t1, t2, t3, t4 = vt + 10, vt + 11, vt + 12, vt + 13, vt + 14
        for k in range(5):
            a(f'v_lshlrev_b32 v{f[2*k]}, 16, v{vx+k}')
            a(f'v_and_b32 v{f[2*k+1]}, {S_HIMASK}, v{vx+k}')
        a(f'v_add_f32 v{t0}, v{f[0]}, v{f[1]}')
        for i in range(2, 10):
            a(f'v_add_f32 v{t0}, v{t0}, v{f[i]}')
        self.wave_sum(t0)
        a(f'v_mul_f32 v{t0}, {hex(f2u(1.0/640))}, v{t0}')
        a(f'v_sub_f32 v{t2}, v{f[0]}, v{t0}')
        a(f'v_mul_f32 v{t1}, v{t2}, v{t2}')
        for i in range(1, 10):
            a(f'v_sub_f32 v{t2}, v{f[i]}, v{t0}')
            a(f'v_fma_f32 v{t1}, v{t2}, v{t2}, v{t1}')
        self.wave_sum(t1)
        a(f'v_mul_f32 v{t1}, {hex(f2u(1.0/640))}, v{t1}')
        self.round_bf16(t0)
        self.round_bf16(t1)
        a(f'v_add_f32 v{t1}, {hex(f2u(1e-5))}, v{t1}')
        self.round_bf16(t1)
        a(f'v_sqrt_f32 v{t1}, v{t1}')
        self.round_bf16(t1)
        for i in range(10):
            a(f'v_sub_f32 v{f[i]}, v{f[i]}, v{t0}')
        for k in range(5):
            a(f'v_cvt_pk_bf16_f32 v{t2}, v{f[2*k]}, v{f[2*k+1]}')
            a(f'v_lshlrev_b32 v{f[2*k]}, 16, v{t2}')
            a(f'v_and_b32 v{f[2*k+1]}, {S_HIMASK}, v{t2}')
        a(f'v_rcp_f32 v{t0}, v{t1}')
        for i in range(10):
            a(f'v_mul_f32 v{t2}, v{f[i]}, v{t0}')
            a(f'v_fma_f32 v{t3}, -v{t2}, v{t1}, v{f[i]}')
            a(f'v_fma_f32 v{f[i]}, v{t3}, v{t0}, v{t2}')
        a(f's_mul_i32 s3, {S_WAVE}, 2560')
        a(f'v_lshlrev_b32 v{t4}, 3, v{V_LANE}')
        a(f'v_add_u32 v{t4}, s3, v{t4}')
        for k in range(5):
            a(f'v_cvt_pk_bf16_f32 v{t1}, v{f[2*k]}, v{f[2*k+1]}')
            a(f'v_perm_b32 v{t2}, v{t1}, v{t1}, {S_SEL_LO}')
            a(f'v_perm_b32 v{t3}, v{t1}, v{t1}, {S_SEL_HI}')
            a(f'ds_write_b64 v{t4}, v[{t2}:{t3}] offset:{L_XD + 512*k}')

    def sel_operand(self, dst, src):
        for r in range(4):
            self.a(f'v_and_b32 v{dst+r}, v{src}, v{V_MASK+r}')

    def qpart_issue(self, vw):
        a = self.a
        a(f's_cmp_ge_u32 {S_WAVE}, 3')
        a('s_cselect_b32 s59, 1, 0')
        a('s_mul_i32 s3, s59, 3')
        a(f's_sub_u32 s58, {S_WAVE}, s3')
        a(f's_mul_i32 s3, {S_J}, 80')
        a('s_mul_i32 s60, s59, 40')
        a('s_add_u32 s3, s3, s60')
        a('s_mul_i32 s3, s3, 12288')
        a(f's_mul_i32 s60, {S_H}, 384')
        a('s_add_u32 s3, s3, s60')
        a('s_lshl_b32 s60, s58, 7')
        a('s_add_u32 s3, s3, s60')
        a(f'v_lshrrev_b32 v2, 3, v{V_LANE}')
        a('v_mul_u32_u24 v2, 12288, v2')
        a(f'v_and_b32 v3, 7, v{V_LANE}')
        a('v_lshlrev_b32 v3, 4, v3')
        a('v_add_u32 v2, v2, v3')
        a('v_add_u32 v2, s3, v2')
        for t in range(5):
            a(f'global_load_dwordx4 v[{vw+4*t}:{vw+4*t+3}], v2, {sp(P_WQ)}')
            if t < 4:
                a('v_add_u32 v2, 98304, v2')
        a('s_mov_b32 s62, s58')
        a('s_mov_b32 s63, s59')
    def qpart_compute(self, vw, vt):
        a = self.a
        acc = vt; aop = vt + 16; xv = vt + 20; ad = vt + 40
        for i in range(16):
            a(f'v_mov_b32 v{acc+i}, 0')
        a(f's_mul_i32 s3, {S_J}, 80')
        a('s_mul_i32 s60, s63, 40')
        a('s_add_u32 s3, s3, s60')
        a('s_lshl_b32 s3, s3, 2')
        a(f'v_lshrrev_b32 v{ad}, 3, v{V_LANE}')
        a(f'v_lshlrev_b32 v{ad}, 2, v{ad}')
        a(f'v_add_u32 v{ad}, s3, v{ad}')
        for t in range(5):
            for b in range(4):
                a(f'ds_read_b32 v{xv+t*4+b}, v{ad} offset:{L_XD + b*2560 + 32*t}')
        a('s_waitcnt lgkmcnt(0)')
        for t in range(5):
            a(f's_waitcnt vmcnt({4-t})') if self.cfg.get('qpart_vm', True) else None
            for b in range(4):
                self.sel_operand(aop, xv + t*4 + b)
                a(f'v_mfma_f32_16x16x32_bf16 v[{acc+4*b}:{acc+4*b+3}], v[{aop}:{aop+3}], v[{vw+4*t}:{vw+4*t+3}], v[{acc+4*b}:{acc+4*b+3}]')
        a(f'v_lshrrev_b32 v{ad}, 5, v{V_LANE}')
        a(f'v_mul_u32_u24 v{ad}, 3072, v{ad}')
        a(f'v_and_b32 v{xv}, 7, v{V_LANE}')
        a(f'v_lshlrev_b32 v{xv}, 5, v{xv}')
        a(f'v_add_u32 v{ad}, v{ad}, v{xv}')
        a(f'v_bfe_u32 v{xv}, v{V_LANE}, 4, 1')
        a(f'v_lshlrev_b32 v{xv}, 4, v{xv}')
        a(f'v_add_u32 v{ad}, v{ad}, v{xv}')
        a('s_mul_i32 s3, s63, 6144')
        a('s_lshl_b32 s60, s62, 8')
        a('s_add_u32 s3, s3, s60')
        a(f's_add_u32 s3, s3, {L_TMP}')
        a(f'v_add_u32 v{ad}, s3, v{ad}')
        self.valid_exec_on()
        for b in range(4):
            a(f'ds_write_b128 v{ad}, v[{acc+4*b}:{acc+4*b+3}] offset:{768*b}')
        self.exec_all()
    def valid_exec_on(self):
        self.a('s_mov_b32 exec_lo, 0x00ff00ff')
        self.a('s_mov_b32 exec_hi, 0xff00ff00')
    def exec_lo32(self):
        self.a('s_mov_b32 exec_lo, -1')
        self.a('s_mov_b32 exec_hi, 0')
    def exec_all(self):
        self.a('s_mov_b64 exec, -1')
    def qpart_publish(self, vt, pol=''):
        a = self.a
        a(f'v_lshlrev_b32 v{vt}, 4, v0')
        a(f'v_add_u32 v{vt+1}, {L_TMP}, v{vt}')
        for s in range(4):
            a(f'ds_read_b128 v[{vt+4+4*s}:{vt+7+4*s}], v{vt+1} offset:{3072*s}')
        a('s_waitcnt lgkmcnt(0)')
        for i in range(4):
            a(f'v_add_f32 v{vt+4+i}, v{vt+4+i}, v{vt+8+i}')
            a(f'v_add_f32 v{vt+12+i}, v{vt+12+i}, v{vt+16+i}')
        for i in range(4):
            a(f'v_add_f32 v{vt+4+i}, v{vt+4+i}, v{vt+12+i}')
        a(f's_mul_i32 s3, s2, 3072')
        a(f's_add_u32 s3, s3, {WS_QP}')
        a(f'v_add_u32 v{vt}, s3, v{vt}')
        a(f'global_store_dwordx4 v{vt}, v[{vt+4}:{vt+7}], {sp(P_WS)} {pol}')

    def qgather_issue(self, vt, pol=''):
        a = self.a
        a(f'v_lshlrev_b32 v{vt}, 4, v0')
        a(f's_mul_i32 s3, {S_H}, {8*3072}')
        a(f's_add_u32 s3, s3, {WS_QP}')
        a(f'v_add_u32 v{vt+1}, s3, v{vt}')
        for i in range(8):
            a(f'global_load_dwordx4 v[{vt+4+4*i}:{vt+7+4*i}], v{vt+1}, {sp(P_WS)} {pol}')
            if i < 7:
                a(f'v_add_u32 v{vt+1}, 3072, v{vt+1}')
    def qgather_finish(self, vt, vm):
        a = self.a
        a(f's_waitcnt vmcnt({vm})')
        for step in (16, 8, 4):
            for k in range(0, step, 4):
                for i in range(4):
                    a(f'v_add_f32 v{vt+4+k+i}, v{vt+4+k+i}, v{vt+4+k+step+i}')
        a(f'v_cvt_pk_bf16_f32 v{vt+2}, v{vt+4}, v{vt+5}')
        a(f'v_cvt_pk_bf16_f32 v{vt+3}, v{vt+6}, v{vt+7}')
        a(f'v_lshlrev_b32 v{vt}, 3, v0')
        a(f'ds_write_b64 v{vt}, v[{vt+2}:{vt+3}] offset:{L_Q}')

    def ffn(self, S_F, vd, vg, vt, pol=''):
        a = self.a
        L = V_LANE
        skip = self.lab('ffn_nodown')
        a(f's_cmp_ge_u32 {S_WAVE}, 5')
        a(f's_cbranch_scc1 {skip}')
        a(f'v_lshrrev_b32 v2, 4, v{L}')
        a('v_mul_u32_u24 v2, 1280, v2')
        a(f'v_and_b32 v3, 15, v{L}')
        a('v_lshlrev_b32 v3, 4, v3')
        a('v_add_u32 v2, v2, v3')
        a(f's_mul_i32 s3, {S_F}, {64*1280}')
        a(f's_lshl_b32 s58, {S_WAVE}, 8')
        a('s_add_u32 s3, s3, s58')
        a('v_add_u32 v2, s3, v2')
        for t in range(16):
            a(f'global_load_dwordx4 v[{vd+4*t}:{vd+4*t+3}], v2, {sp(P_WD)}')
            if t < 15:
                a('v_add_u32 v2, 5120, v2')
        a.label(skip)
        a(f'v_lshrrev_b32 v2, 3, v{L}')
        a('v_mul_u32_u24 v2, 3072, v2')
        a(f'v_and_b32 v3, 7, v{L}')
        a('v_lshlrev_b32 v3, 4, v3')
        a('v_add_u32 v2, v2, v3')
        a(f's_mul_i32 s3, {S_WAVE}, {80*3072}')
        a(f's_lshl_b32 s58, {S_F}, 7')
        a('s_add_u32 s3, s3, s58')
        a('v_add_u32 v2, s3, v2')
        for t in range(10):
            a(f'global_load_dwordx4 v[{vg+8*t}:{vg+8*t+3}], v2, {sp(P_WG)}')
            a(f'global_load_dwordx4 v[{vg+8*t+4}:{vg+8*t+7}], v2, {sp(P_WU)}')
            if t < 9:
                a('v_add_u32 v2, 24576, v2')
        accg = vt; accu = vt + 16; aop = vt + 32; xv = vt + 36; ad = vt + 40
        for i in range(32):
            a(f'v_mov_b32 v{vt+i}, 0')
        a(f's_mul_i32 s3, {S_WAVE}, 320')
        a(f'v_lshrrev_b32 v{ad}, 3, v{L}')
        a(f'v_lshlrev_b32 v{ad}, 2, v{ad}')
        a(f'v_add_u32 v{ad}, s3, v{ad}')
        for t in range(10):
            for b in range(4):
                a(f'ds_read_b32 v{xv+b}, v{ad} offset:{L_XD + b*2560 + 32*t}')
            a(f's_waitcnt vmcnt({2*(9-t)}) lgkmcnt(0)')
            for b in range(4):
                self.sel_operand(aop, xv + b)
                a(f'v_mfma_f32_16x16x32_bf16 v[{accg+4*b}:{accg+4*b+3}], v[{aop}:{aop+3}], v[{vg+8*t}:{vg+8*t+3}], v[{accg+4*b}:{accg+4*b+3}]')
                a(f'v_mfma_f32_16x16x32_bf16 v[{accu+4*b}:{accu+4*b+3}], v[{aop}:{aop+3}], v[{vg+8*t+4}:{vg+8*t+7}], v[{accu+4*b}:{accu+4*b+3}]')
        a(f'v_lshrrev_b32 v{ad}, 5, v{L}')
        a(f'v_lshlrev_b32 v{ad}, 11, v{ad}')
        a(f'v_and_b32 v{xv}, 7, v{L}')
        a(f'v_lshlrev_b32 v{xv}, 5, v{xv}')
        a(f'v_add_u32 v{ad}, v{ad}, v{xv}')
        a(f'v_bfe_u32 v{xv}, v{L}, 4, 1')
        a(f'v_lshlrev_b32 v{xv}, 4, v{xv}')
        a(f'v_add_u32 v{ad}, v{ad}, v{xv}')
        a(f's_lshl_b32 s3, {S_WAVE}, 12')
        a(f's_add_u32 s3, s3, {L_TMP}')
        a(f'v_add_u32 v{ad}, s3, v{ad}')
        self.valid_exec_on()
        for b in range(4):
            a(f'ds_write_b128 v{ad}, v[{accg+4*b}:{accg+4*b+3}] offset:{256*b}')
            a(f'ds_write_b128 v{ad}, v[{accu+4*b}:{accu+4*b+3}] offset:{1024+256*b}')
        self.exec_all()
        a('s_waitcnt lgkmcnt(0)')
        a('s_barrier')
        skip2 = self.lab('ffn_noact')
        a(f's_cmp_ge_u32 {S_WAVE}, 4')
        a(f's_cbranch_scc1 {skip2}')
        a(f's_lshl_b32 s3, {S_WAVE}, 8')
        a(f's_add_u32 s3, s3, {L_TMP}')
        a(f'v_lshlrev_b32 v{ad}, 2, v{L}')
        a(f'v_add_u32 v{ad}, s3, v{ad}')
        for s in range(16):
            a(f'ds_read_b32 v{vt+s}, v{ad} offset:{2048*s}')
            a(f'ds_read_b32 v{vt+16+s}, v{ad} offset:{2048*s+1024}')
        a('s_waitcnt lgkmcnt(0)')
        for base in (vt, vt + 16):
            for step in (8, 4, 2, 1):
                for k in range(step):
                    a(f'v_add_f32 v{base+k}, v{base+k}, v{base+k+step}')
        g = vt; u = vt + 16; t0 = vt + 1; t1 = vt + 2; t2 = vt + 3
        self.round_bf16(g); self.round_bf16(u)
        a(f'v_mul_f32 v{t0}, v{g}, v{g}')
        a(f'v_mul_f32 v{t0}, v{t0}, v{g}')
        a(f'v_mov_b32 v{t1}, {hex(f2u(0.044715))}')
        a(f'v_fma_f32 v{t0}, v{t0}, v{t1}, v{g}')
        a(f'v_mul_f32 v{t0}, {hex(f2u(0.7978845608028654 * 2.0 * 1.4426950408889634))}, v{t0}')
        a(f'v_exp_f32 v{t0}, v{t0}')
        a(f'v_add_f32 v{t0}, 1.0, v{t0}')
        a(f'v_rcp_f32 v{t0}, v{t0}')
        a(f'v_fma_f32 v{t0}, v{t0}, -2.0, 1.0')
        a(f'v_add_f32 v{t0}, 1.0, v{t0}')
        a(f'v_mul_f32 v{t1}, 0.5, v{g}')
        a(f'v_mul_f32 v{t0}, v{t0}, v{t1}')
        self.round_bf16(t0)
        a(f'v_mul_f32 v{t0}, v{t0}, v{u}')
        a(f'v_cvt_pk_bf16_f32 v{t0}, v{t0}, v{t0}')
        a(f's_lshl_b32 s3, {S_WAVE}, 8')
        a(f'v_lshlrev_b32 v{ad}, 2, v{L}')
        a(f'v_add_u32 v{ad}, s3, v{ad}')
        a(f'ds_write_b32 v{ad}, v{t0} offset:{L_HD}')
        a.label(skip2)
        a('s_waitcnt lgkmcnt(0)')
        a('s_barrier')
        skip3 = self.lab('ffn_nodown2')
        a(f's_cmp_ge_u32 {S_WAVE}, 5')
        a(f's_cbranch_scc1 {skip3}')
        self.proj_tile(vd, 16, L_HD, 64, vt)
        a(f's_mul_i32 s3, {S_F}, 10240')
        a(f's_add_u32 s3, s3, {WS_YF}')
        self.proj_store(vt, pol)
        a.label(skip3)

    def proj_tile(self, vd, nt, ltab, tabw, vt):
        a = self.a
        L = V_LANE
        acc = vt; aop = vt + 8; xv = vt + 12; ad = vt + 44
        for i in range(8):
            a(f'v_mov_b32 v{acc+i}, 0')
        a(f'v_bfe_u32 v{ad}, v{L}, 3, 1')
        a(f'v_mul_u32_u24 v{ad}, {tabw*4}, v{ad}')
        a(f'v_lshrrev_b32 v{xv}, 4, v{L}')
        a(f'v_lshlrev_b32 v{xv}, 2, v{xv}')
        a(f'v_add_u32 v{ad}, v{ad}, v{xv}')
        for t in range(nt):
            for P in range(2):
                a(f'ds_read_b32 v{xv+2*t+P}, v{ad} offset:{ltab + 2*P*tabw*4 + 16*t}')
        a('s_waitcnt vmcnt(0) lgkmcnt(0)')
        for t in range(nt):
            for P in range(2):
                self.sel_operand(aop, xv + 2*t + P)
                a(f'v_mfma_f32_16x16x32_bf16 v[{acc+4*P}:{acc+4*P+3}], v[{aop}:{aop+3}], v[{vd+4*t}:{vd+4*t+3}], v[{acc+4*P}:{acc+4*P+3}]')
    def proj_store(self, vt, pol):
        a = self.a
        L = V_LANE
        ad = vt + 44; x = vt + 12
        a(f'v_lshrrev_b32 v{ad}, 5, v{L}')
        a(f'v_mul_u32_u24 v{ad}, 2560, v{ad}')
        a(f'v_and_b32 v{x}, 15, v{L}')
        a(f'v_lshlrev_b32 v{x}, 5, v{x}')
        a(f'v_add_u32 v{ad}, v{ad}, v{x}')
        a(f'v_bfe_u32 v{x}, v{L}, 4, 1')
        a(f'v_lshlrev_b32 v{x}, 4, v{x}')
        a(f'v_add_u32 v{ad}, v{ad}, v{x}')
        a(f's_lshl_b32 s58, {S_WAVE}, 9')
        a('s_add_u32 s3, s3, s58')
        a(f'v_add_u32 v{ad}, s3, v{ad}')
        a(f'global_store_dwordx4 v{ad}, v[{vt}:{vt+3}], {sp(P_WS)} {pol}')
        a(f'v_add_u32 v{ad}, 5120, v{ad}')
        a(f'global_store_dwordx4 v{ad}, v[{vt+4}:{vt+7}], {sp(P_WS)} {pol}')

    V_OFF = 2
    V_ZERO, V_ONE, V_CLAIM = 6, 7, 8
    V_M, V_ML, V_L = 13, 14, 15
    V_Q = 16
    V_ACC = 28
    V_S = 40
    V_T = 44
    V_A = 48
    V_K = 64
    V_V = 112
    S_BLK, S_REM, S_OFFN, S_VALN, S_BCUR, S_BACC, S_BNXT, S_HOFF = 's43', 's44', 's45', 's46', 's47', 's48', 's49', 's50'
    S_CNT = 52
    S_SCALE, S_LOG2E = 's66', 's67'

    def main_consts(self):
        c = self.cfg
        self.N = 4
        self.BB = self.N * 3072
        self.BPB = 3145728 // self.BB
        self.NBLK = 4 * self.BPB
        self.BIG = c.get('big', 4)
        self.NBIG = int(self.NBLK * c.get('frac', 0.875)) // self.BIG
        self.NW = 8 * W

    def chunk_decode(self, c):
        a = self.a
        a(f's_mul_i32 s58, {c}, {self.BIG}')
        a(f's_sub_u32 s59, {c}, {self.NBIG}')
        a(f's_add_u32 s59, s59, {self.NBIG*self.BIG}')
        a(f's_cmp_lt_u32 {c}, {self.NBIG}')
        a(f's_cselect_b32 {self.S_REM}, {self.BIG}, 1')
        a(f's_cselect_b32 {self.S_BLK}, s58, s59')
    def block_off(self):
        a = self.a
        a(f's_lshr_b32 {self.S_BNXT}, {self.S_BLK}, 8')
        a(f's_mul_i32 s58, {self.S_BNXT}, 100663296')
        a(f's_and_b32 s59, {self.S_BLK}, 255')
        a(f's_mul_i32 s59, s59, {self.BB}')
        a(f's_add_u32 {self.S_OFFN}, s58, s59')
        a(f's_add_u32 {self.S_OFFN}, {self.S_OFFN}, {self.S_HOFF}')
    def kv_loads(self, r, srd, g):
        pol = self.cfg.get('pol', 'nt')
        for j in range(3):
            self.a(f'buffer_load_dwordx4 v[{r+4*j}:{r+4*j+3}], v{self.V_OFF+g}, s[{srd}:{srd+3}], {self.S_OFFN} offen offset:{128*j} {pol}')

    def main_setup(self):
        a = self.a
        self.main_consts()
        L = V_LANE
        a(f's_mov_b32 s4, s{P_K}')
        a(f's_and_b32 s5, s{P_K+1}, 0xffff')
        a(f's_mov_b32 s6, {KVBYTES}')
        a('s_mov_b32 s7, 0x20000')
        a(f's_mov_b32 s8, s{P_V}')
        a(f's_and_b32 s9, s{P_V+1}, 0xffff')
        a(f's_mov_b32 s10, {KVBYTES}')
        a('s_mov_b32 s11, 0x20000')
        a(f's_mov_b32 s12, s{P_K}')
        a(f's_and_b32 s13, s{P_K+1}, 0xffff')
        a('s_mov_b32 s14, 0')
        a('s_mov_b32 s15, 0x20000')
        o = self.V_OFF
        a(f'v_lshrrev_b32 v{o}, 3, v{L}')
        a(f'v_mul_u32_u24 v{o}, 384, v{o}')
        a(f'v_and_b32 v{o+1}, 7, v{L}')
        a(f'v_lshlrev_b32 v{o+1}, 4, v{o+1}')
        a(f'v_add_u32 v{o}, v{o}, v{o+1}')
        for g in range(1, self.N):
            a(f'v_add_u32 v{o+g}, {3072*g}, v{o}')
        a(f'v_mov_b32 v{self.V_ZERO}, 0')
        a(f'v_mov_b32 v{self.V_ONE}, 1')
        a(f's_mul_i32 {self.S_HOFF}, {S_H}, 3145728')
        a(f's_lshl_b32 s58, {S_H}, 8')
        a(f's_add_u32 s58, s58, {WS_CNT}')
        a(f's_add_u32 s{self.S_CNT}, s{P_WS}, s58')
        a(f's_addc_u32 s{self.S_CNT+1}, s{P_WS+1}, 0')
        a(f's_mov_b32 {self.S_SCALE}, {hex(f2u(192 ** -0.5))}')
        a(f's_mov_b32 {self.S_LOG2E}, {hex(f2u(1.4426950408889634))}')

    def ring_start(self):
        a = self.a
        a(f's_lshl_b32 s60, {S_J}, 3')
        a(f's_add_u32 s60, s60, {S_WAVE}')
        self.chunk_decode('s60')
        self.block_off()
        for g in range(self.N): self.kv_loads(self.V_K + 12 * g, 4, g)
        for g in range(self.N): self.kv_loads(self.V_V + 12 * g, 8, g)
        a(f's_mov_b32 {self.S_BCUR}, {self.S_BNXT}')
        a(f's_add_u32 {self.S_BLK}, {self.S_BLK}, 1')
        a(f's_sub_u32 {self.S_REM}, {self.S_REM}, 1')

    def slot_zero(self):
        a = self.a
        t = self.V_S
        for i in range(4):
            a(f'v_mov_b32 v{t+i}, 0')
        a(f'v_lshlrev_b32 v{self.V_T}, 4, v0')
        a(f'v_add_u32 v{self.V_T}, {L_SLOT}, v{self.V_T}')
        for k in range(6):
            a(f'ds_write_b128 v{self.V_T}, v[{t}:{t+3}] offset:{8192*k}')
        sk = self.lab('sz')
        a(f's_cmp_ge_u32 {S_WAVE}, 2')
        a(f's_cbranch_scc1 {sk}')
        a(f'ds_write_b128 v{self.V_T}, v[{t}:{t+3}] offset:{8192*6}')
        a.label(sk)
    def slot_minit(self):
        a = self.a
        sk = self.lab('sm')
        a(f's_cmp_lg_u32 {S_WAVE}, 0')
        a(f's_cbranch_scc1 {sk}')
        a(f'v_mul_u32_u24 v{self.V_T}, {SLOT_SZ}, v{V_LANE}')
        a(f'v_mov_b32 v{self.V_T+1}, {hex(f2u(-1e30))}')
        self.exec_lo32()
        a(f'ds_write_b32 v{self.V_T}, v{self.V_T+1} offset:{L_SLOT + 1536}')
        self.exec_all()
        a.label(sk)

    def load_q(self, sb):
        a = self.a
        t = self.V_T
        a(f's_mul_i32 s58, {sb}, 384')
        a(f'v_and_b32 v{t}, 7, v{V_LANE}')
        a(f'v_lshlrev_b32 v{t}, 4, v{t}')
        a(f'v_add_u32 v{t}, s58, v{t}')
        for c in range(3):
            a(f'ds_read_b128 v[{self.V_Q+4*c}:{self.V_Q+4*c+3}], v{t} offset:{L_Q + 128*c}')
    def reset_acc(self):
        a = self.a
        for i in range(12):
            a(f'v_mov_b32 v{self.V_ACC+i}, 0')
        a(f'v_mov_b32 v{self.V_L}, 0')
        a(f'v_mov_b32 v{self.V_M}, {hex(f2u(-1e30))}')
        a(f'v_mov_b32 v{self.V_ML}, {hex(f2u(-1e30))}')
    def flush(self):
        a = self.a
        L = V_LANE
        t = self.V_T
        a(f'v_add_f32_dpp v{self.V_L}, v{self.V_L}, v{self.V_L} row_ror:8 row_mask:0xf bank_mask:0xf')
        self.cross_rows('v_add_f32', self.V_L)
        a(f's_lshl_b32 s58, {self.S_BACC}, 3')
        a(f's_add_u32 s58, s58, {S_WAVE}')
        a(f's_mul_i32 s58, s58, {SLOT_SZ}')
        a(f's_add_u32 s58, s58, {L_SLOT}')
        a(f'v_lshrrev_b32 v{t}, 5, v{L}')
        a(f'v_mul_u32_u24 v{t}, 768, v{t}')
        a(f'v_and_b32 v{t+1}, 7, v{L}')
        a(f'v_lshlrev_b32 v{t+1}, 5, v{t+1}')
        a(f'v_add_u32 v{t}, v{t}, v{t+1}')
        a(f'v_bfe_u32 v{t+1}, v{L}, 4, 1')
        a(f'v_lshlrev_b32 v{t+1}, 4, v{t+1}')
        a(f'v_add_u32 v{t}, v{t}, v{t+1}')
        a(f'v_add_u32 v{t}, s58, v{t}')
        self.valid_exec_on()
        for c in range(3):
            a(f'ds_write_b128 v{t}, v[{self.V_ACC+4*c}:{self.V_ACC+4*c+3}] offset:{256*c}')
        a('s_mov_b64 exec, 1')
        a(f'v_mov_b32 v{t+2}, s58')
        a(f'ds_write_b64 v{t+2}, v[{self.V_ML}:{self.V_ML+1}] offset:1536')
        self.exec_all()

    def main_loop(self):
        a = self.a
        N = self.N
        T = 6 * N + 1
        K, V, Q, ACC, S, TT, AOP = self.V_K, self.V_V, self.V_Q, self.V_ACC, self.V_S, self.V_T, self.V_A
        lp, have, claim, claimed, noswitch, nomax, done = [self.lab(x) for x in ('loop', 'have', 'claim', 'claimed', 'nosw', 'nomax', 'done')]
        self.reset_acc()
        a(f's_mov_b32 {self.S_BACC}, {self.S_BCUR}')
        self.load_q(self.S_BACC)
        a('s_waitcnt lgkmcnt(0)')
        assert self.BIG > 1
        a.label(lp)
        a(f's_waitcnt vmcnt({T-1})')
        a(f's_cmp_eq_u32 {self.S_REM}, 0')
        a(f's_cbranch_scc0 {have}')
        a(f'v_readfirstlane_b32 s60, v{self.V_CLAIM}')
        a(f's_add_u32 s60, s60, {self.NW}')
        self.chunk_decode('s60')
        a.label(have)
        self.block_off()
        a(f's_cmp_lt_u32 {self.S_BLK}, {self.NBLK}')
        a(f's_cselect_b32 s6, {KVBYTES}, 0')
        a(f's_cselect_b32 s10, {KVBYTES}, 0')
        a(f's_cselect_b32 {self.S_VALN}, 1, 0')
        a(f's_add_u32 {self.S_BLK}, {self.S_BLK}, 1')
        a(f's_sub_u32 {self.S_REM}, {self.S_REM}, 1')
        a(f's_cmp_eq_u32 {self.S_REM}, 0')
        a(f's_cbranch_scc1 {claim}')
        a(f'buffer_load_dword v{self.V_CLAIM}, v{self.V_ZERO}, s[12:15], 0 offen')
        a(f's_branch {claimed}')
        a.label(claim)
        a('s_mov_b64 exec, 1')
        a(f'global_atomic_add v{self.V_CLAIM}, v{self.V_ZERO}, v{self.V_ONE}, s[{self.S_CNT}:{self.S_CNT+1}] sc0')
        self.exec_all()
        a.label(claimed)
        a(f's_cmp_eq_u32 {self.S_BCUR}, {self.S_BACC}')
        a(f's_cbranch_scc1 {noswitch}')
        self.flush()
        self.reset_acc()
        a(f's_mov_b32 {self.S_BACC}, {self.S_BCUR}')
        self.load_q(self.S_BACC)
        a('s_waitcnt lgkmcnt(0)')
        a.label(noswitch)
        for g in range(N):
            a(f's_waitcnt vmcnt({T-3})')
            k = K + 12 * g
            a(f'v_dot2_f32_bf16 v{S+g}, v{k}, v{Q}, 0')
            for i in range(1, 12):
                a(f'v_dot2_f32_bf16 v{S+g}, v{k+i}, v{Q+i}, v{S+g}')
            self.kv_loads(k, 4, g)
        for m in ('quad_perm:[1,0,3,2]', 'quad_perm:[2,3,0,1]', 'row_half_mirror'):
            for g in range(N):
                a(f'v_add_f32_dpp v{S+g}, v{S+g}, v{S+g} {m} row_mask:0xf bank_mask:0xf')
        a(f'v_cvt_pk_bf16_f32 v{TT}, v{S}, v{S+1}')
        a(f'v_cvt_pk_bf16_f32 v{TT+1}, v{S+2}, v{S+3}')
        a(f'v_lshlrev_b32 v{S}, 16, v{TT}')
        a(f'v_and_b32 v{S+1}, {S_HIMASK}, v{TT}')
        a(f'v_lshlrev_b32 v{S+2}, 16, v{TT+1}')
        a(f'v_and_b32 v{S+3}, {S_HIMASK}, v{TT+1}')
        for g in range(N):
            a(f'v_mul_f32 v{S+g}, {self.S_SCALE}, v{S+g}')
        a(f'v_cvt_pk_bf16_f32 v{TT}, v{S}, v{S+1}')
        a(f'v_cvt_pk_bf16_f32 v{TT+1}, v{S+2}, v{S+3}')
        a(f'v_lshlrev_b32 v{S}, 16, v{TT}')
        a(f'v_and_b32 v{S+1}, {S_HIMASK}, v{TT}')
        a(f'v_lshlrev_b32 v{S+2}, 16, v{TT+1}')
        a(f'v_and_b32 v{S+3}, {S_HIMASK}, v{TT+1}')
        a(f'v_max3_f32 v{TT}, v{S}, v{S+1}, v{S+2}')
        a(f'v_max_f32 v{TT}, v{TT}, v{S+3}')
        a(f'v_cmp_gt_f32 vcc, v{TT}, v{self.V_M}')
        a(f's_cbranch_vccz {nomax}')
        a(f'v_max_f32_dpp v{TT}, v{TT}, v{TT} row_ror:8 row_mask:0xf bank_mask:0xf')
        self.cross_rows('v_max_f32', TT)
        a(f'v_max_f32 v{self.V_M}, v{self.V_M}, v{TT}')
        a(f'v_mul_f32 v{TT+1}, {self.S_LOG2E}, v{self.V_M}')
        a(f'v_sub_f32 v{TT+2}, v{self.V_ML}, v{TT+1}')
        a(f'v_exp_f32 v{TT+2}, v{TT+2}')
        a(f'v_mov_b32 v{self.V_ML}, v{TT+1}')
        for i in range(12):
            a(f'v_mul_f32 v{ACC+i}, v{ACC+i}, v{TT+2}')
        a(f'v_mul_f32 v{self.V_L}, v{self.V_L}, v{TT+2}')
        a.label(nomax)
        for g in range(N):
            a(f'v_fma_f32 v{S+g}, v{S+g}, {self.S_LOG2E}, -v{self.V_ML}')
        for g in range(N):
            a(f'v_exp_f32 v{S+g}, v{S+g}')
        for g in range(N):
            a(f'v_add_f32 v{self.V_L}, v{self.V_L}, v{S+g}')
            a(f'v_cvt_pk_bf16_f32 v{TT+g}, v{S+g}, v{S+g}')
        for g in range(N):
            self.sel_operand(AOP + 4 * g, TT + g)
        for g in range(N):
            a(f's_waitcnt vmcnt({T-3})')
            v = V + 12 * g
            for c in range(3):
                a(f'v_mfma_f32_16x16x32_bf16 v[{ACC+4*c}:{ACC+4*c+3}], v[{AOP+4*g}:{AOP+4*g+3}], v[{v+4*c}:{v+4*c+3}], v[{ACC+4*c}:{ACC+4*c+3}]')
            self.kv_loads(v, 8, g)
        a(f's_mov_b32 {self.S_BCUR}, {self.S_BNXT}')
        a(f's_cmp_eq_u32 {self.S_VALN}, 1')
        a(f's_cbranch_scc1 {lp}')
        a('s_waitcnt vmcnt(0)')
        self.flush()
        a('s_waitcnt lgkmcnt(0)')

    def wg_combine(self, vt, pol=''):
        a = self.a
        b = vt; ad = vt + 1; M = vt + 2; lsum = vt + 3
        ml = vt + 4
        o = vt + 20
        d = vt + 24
        a(f'v_mul_u32_u24 v{b}, 1366, v0')
        a(f'v_lshrrev_b32 v{b}, 16, v{b}')
        a(f'v_mul_u32_u24 v{ad}, {8*SLOT_SZ}, v{b}')
        a(f'v_add_u32 v{ad}, {L_SLOT}, v{ad}')
        for w in range(8):
            a(f'ds_read_b64 v[{ml+2*w}:{ml+2*w+1}], v{ad} offset:{SLOT_SZ*w + 1536}')
        a(f'v_mul_u32_u24 v{M}, 48, v{b}')
        a(f'v_sub_u32 v{M}, v0, v{M}')
        a(f'v_lshlrev_b32 v{M}, 4, v{M}')
        a(f'v_add_u32 v{lsum}, v{ad}, v{M}')
        for w in range(8):
            for p in range(2):
                a(f'ds_read_b128 v[{d+(2*w+p)*4}:{d+(2*w+p)*4+3}], v{lsum} offset:{SLOT_SZ*w + 768*p}')
        a('s_waitcnt lgkmcnt(0)')
        a(f'v_max3_f32 v{M}, v{ml}, v{ml+2}, v{ml+4}')
        a(f'v_max3_f32 v{M}, v{M}, v{ml+6}, v{ml+8}')
        a(f'v_max3_f32 v{M}, v{M}, v{ml+10}, v{ml+12}')
        a(f'v_max_f32 v{M}, v{M}, v{ml+14}')
        for w in range(8):
            a(f'v_sub_f32 v{ml+2*w}, v{ml+2*w}, v{M}')
        for w in range(8):
            a(f'v_exp_f32 v{ml+2*w}, v{ml+2*w}')
        a(f'v_mul_f32 v{lsum}, v{ml}, v{ml+1}')
        for w in range(1, 8):
            a(f'v_fma_f32 v{lsum}, v{ml+2*w}, v{ml+2*w+1}, v{lsum}')
        for i in range(4):
            a(f'v_add_f32 v{o+i}, v{d+i}, v{d+4+i}')
            a(f'v_mul_f32 v{o+i}, v{o+i}, v{ml}')
        for w in range(1, 8):
            for i in range(4):
                a(f'v_add_f32 v{d+8*w+i}, v{d+8*w+i}, v{d+8*w+4+i}')
                a(f'v_fma_f32 v{o+i}, v{d+8*w+i}, v{ml+2*w}, v{o+i}')
        a(f's_mul_i32 s3, s2, 3072')
        a(f's_add_u32 s3, s3, {WS_RO}')
        a(f'v_lshlrev_b32 v{ad}, 4, v0')
        a(f'v_add_u32 v{ad}, s3, v{ad}')
        a(f'global_store_dwordx4 v{ad}, v[{o}:{o+3}], {sp(P_WS)} {pol}')
        a(f'v_mul_u32_u24 v{d}, 48, v{b}')
        a(f'v_cmp_eq_u32 vcc, v0, v{d}')
        a(f's_and_saveexec_b64 s[56:57], vcc')
        a(f's_lshl_b32 s3, s2, 5')
        a(f's_add_u32 s3, s3, {WS_RM}')
        a(f'v_lshlrev_b32 v{ad}, 3, v{b}')
        a(f'v_add_u32 v{ad}, s3, v{ad}')
        a(f'global_store_dwordx2 v{ad}, v[{M}:{M+1}], {sp(P_WS)} {pol}')
        a('s_mov_b64 exec, s[56:57]')

    def wo_issue(self, vw):
        a = self.a
        L = V_LANE
        a(f'v_lshrrev_b32 v{vw+24}, 4, v{L}')
        a(f'v_mul_u32_u24 v{vw+24}, 1280, v{vw+24}')
        a(f'v_and_b32 v{vw+25}, 15, v{L}')
        a(f'v_lshlrev_b32 v{vw+25}, 4, v{vw+25}')
        a(f'v_add_u32 v{vw+24}, v{vw+24}, v{vw+25}')
        a(f's_mul_i32 s3, s2, {24*1280}')
        a(f's_lshl_b32 s58, {S_WAVE}, 8')
        a('s_add_u32 s3, s3, s58')
        a(f'v_add_u32 v{vw+24}, s3, v{vw+24}')
        for t in range(6):
            a(f'global_load_dwordx4 v[{vw+4*t}:{vw+4*t+3}], v{vw+24}, {sp(P_WO)}')
            if t < 5:
                a(f'v_add_u32 v{vw+24}, 5120, v{vw+24}')
    def hop1_gather(self, vt, pol=''):
        a = self.a
        i_ = vt; r = vt + 1; b = vt + 2; q6 = vt + 3; ad = vt + 4; ad2 = vt + 5
        ml = vt + 6
        o = vt + 8
        t0 = vt + 12; t1 = vt + 13; t2 = vt + 14; t3 = vt + 15
        a(f'v_and_b32 v{i_}, 7, v0')
        a(f'v_lshrrev_b32 v{r}, 3, v0')
        a(f'v_mul_u32_u24 v{b}, 43, v{r}')
        a(f'v_lshrrev_b32 v{b}, 8, v{b}')
        a(f'v_mul_u32_u24 v{q6}, 6, v{b}')
        a(f'v_sub_u32 v{q6}, v{r}, v{q6}')
        a(f'v_mul_u32_u24 v{ad}, 3072, v{i_}')
        a(f'v_mul_u32_u24 v{t0}, 768, v{b}')
        a(f'v_add_u32 v{ad}, v{ad}, v{t0}')
        a(f'v_lshlrev_b32 v{t0}, 4, v{q6}')
        a(f'v_add_u32 v{ad}, v{ad}, v{t0}')
        a(f's_mul_i32 s3, {S_H}, {8*3072}')
        a(f's_mul_i32 s58, {S_J}, 96')
        a('s_add_u32 s3, s3, s58')
        a(f's_add_u32 s3, s3, {WS_RO}')
        a(f'v_add_u32 v{ad}, s3, v{ad}')
        a(f'v_lshlrev_b32 v{ad2}, 5, v{i_}')
        a(f'v_lshlrev_b32 v{t0}, 3, v{b}')
        a(f'v_add_u32 v{ad2}, v{ad2}, v{t0}')
        a(f's_lshl_b32 s3, {S_H}, 8')
        a(f's_add_u32 s3, s3, {WS_RM}')
        a(f'v_add_u32 v{ad2}, s3, v{ad2}')
        a(f'global_load_dwordx4 v[{o}:{o+3}], v{ad}, {sp(P_WS)} {pol}')
        a(f'global_load_dwordx2 v[{ml}:{ml+1}], v{ad2}, {sp(P_WS)} {pol}')
        a('s_waitcnt vmcnt(0)')
        a(f'v_mov_b32 v{t0}, v{ml}')
        for m in ('quad_perm:[1,0,3,2]', 'quad_perm:[2,3,0,1]', 'row_half_mirror'):
            a(f'v_max_f32_dpp v{t0}, v{t0}, v{t0} {m} row_mask:0xf bank_mask:0xf')
        a(f'v_sub_f32 v{t0}, v{ml}, v{t0}')
        a(f'v_exp_f32 v{t0}, v{t0}')
        a(f'v_mul_f32 v{t1}, v{t0}, v{ml+1}')
        for i in range(4):
            a(f'v_mul_f32 v{o+i}, v{o+i}, v{t0}')
        for m in ('quad_perm:[1,0,3,2]', 'quad_perm:[2,3,0,1]', 'row_half_mirror'):
            for v in (t1, o, o + 1, o + 2, o + 3):
                a(f'v_add_f32_dpp v{v}, v{v}, v{v} {m} row_mask:0xf bank_mask:0xf')
        a(f'v_rcp_f32 v{t0}, v{t1}')
        for i in range(4):
            a(f'v_mul_f32 v{t2}, v{o+i}, v{t0}')
            a(f'v_fma_f32 v{t3}, -v{t2}, v{t1}, v{o+i}')
            a(f'v_fma_f32 v{o+i}, v{t3}, v{t0}, v{t2}')
            a(f'v_cvt_pk_bf16_f32 v{o+i}, v{o+i}, v{o+i}')
        a(f'v_mul_u32_u24 v{ad}, 96, v{b}')
        a(f'v_lshlrev_b32 v{t0}, 4, v{q6}')
        a(f'v_add_u32 v{ad}, v{ad}, v{t0}')
        a(f'v_cmp_eq_u32 vcc, 0, v{i_}')
        a(f's_and_saveexec_b64 s[56:57], vcc')
        a(f'ds_write_b128 v{ad}, v[{o}:{o+3}] offset:{L_ON}')
        a('s_mov_b64 exec, s[56:57]')

    def final(self, S_R, vt, pol=''):
        a = self.a
        L = V_LANE
        a(f's_mul_i32 s58, {S_R}, 3277')
        a('s_lshr_b32 s58, s58, 16')
        a('s_mul_i32 s59, s58, 20')
        a(f's_sub_u32 s59, {S_R}, s59')
        a('s_mul_i32 s60, s58, 2560')
        a('s_lshl_b32 s61, s59, 7')
        a('s_add_u32 s60, s60, s61')
        a('s_mov_b32 s62, s58')
        a('s_mov_b32 s63, s59')
        ad = vt; t0 = vt + 1
        d = vt + 4
        f = vt + 20
        a(f'v_lshrrev_b32 v{ad}, 3, v{L}')
        a(f's_lshl_b32 s3, {S_WAVE}, 3')
        a(f'v_add_u32 v{ad}, s3, v{ad}')
        a(f'v_mul_u32_u24 v{ad}, 10240, v{ad}')
        a(f'v_and_b32 v{t0}, 7, v{L}')
        a(f'v_lshlrev_b32 v{t0}, 4, v{t0}')
        a(f'v_add_u32 v{ad}, v{ad}, v{t0}')
        a(f'v_add_u32 v{ad}, s60, v{ad}')
        a(f'v_add_u32 v{t0}, {WS_Y}, v{ad}')
        for k in range(4):
            a(f'global_load_dwordx4 v[{d+4*k}:{d+4*k+3}], v{t0}, {sp(P_WS)} {pol}')
            if k < 3:
                a(f'v_add_u32 v{t0}, {64*10240}, v{t0}')
        for i in range(4):
            a(f'v_mov_b32 v{f+i}, 0')
        sk = self.lab('fin_noffn')
        a(f's_cmp_ge_u32 {S_WAVE}, 3')
        a(f's_cbranch_scc1 {sk}')
        a(f'v_add_u32 v{t0}, {WS_YF}, v{ad}')
        a(f'global_load_dwordx4 v[{f}:{f+3}], v{t0}, {sp(P_WS)} {pol}')
        a.label(sk)
        a('s_waitcnt vmcnt(0)')
        for i in range(4):
            a(f'v_add_f32 v{d+i}, v{d+i}, v{d+4+i}')
            a(f'v_add_f32 v{d+8+i}, v{d+8+i}, v{d+12+i}')
        for i in range(4):
            a(f'v_add_f32 v{d+i}, v{d+i}, v{d+8+i}')
        for i in range(4):
            a(f'v_add_f32_dpp v{d+i}, v{d+i}, v{d+i} row_ror:8 row_mask:0xf bank_mask:0xf')
            a(f'v_add_f32_dpp v{f+i}, v{f+i}, v{f+i} row_ror:8 row_mask:0xf bank_mask:0xf')
        a(f'v_lshrrev_b32 v{ad}, 4, v{L}')
        a(f's_lshl_b32 s3, {S_WAVE}, 2')
        a(f'v_add_u32 v{ad}, s3, v{ad}')
        a(f'v_lshlrev_b32 v{ad}, 7, v{ad}')
        a(f'v_and_b32 v{t0}, 7, v{L}')
        a(f'v_lshlrev_b32 v{t0}, 4, v{t0}')
        a(f'v_add_u32 v{ad}, v{ad}, v{t0}')
        a('s_mov_b32 exec_lo, 0x00ff00ff')
        a('s_mov_b32 exec_hi, 0x00ff00ff')
        a(f'ds_write_b128 v{ad}, v[{d}:{d+3}] offset:{L_RED}')
        a(f'ds_write_b128 v{ad}, v[{f}:{f+3}] offset:{L_RED+4096}')
        self.exec_all()
        a('s_waitcnt lgkmcnt(0)')
        a('s_barrier')
        dn = self.lab('fin_done')
        a(f's_cmp_lg_u32 {S_WAVE}, 0')
        a(f's_cbranch_scc1 {dn}')
        a(f'v_and_b32 v{ad}, 31, v{L}')
        a(f'v_lshlrev_b32 v{ad}, 2, v{ad}')
        a(f'v_lshrrev_b32 v{t0}, 5, v{L}')
        a(f'v_lshlrev_b32 v{t0}, 12, v{t0}')
        a(f'v_add_u32 v{ad}, v{ad}, v{t0}')
        dd = vt + 24
        for k in range(32):
            a(f'ds_read_b32 v{dd+k}, v{ad} offset:{L_RED + 128*k}')
        xv = vt + 2
        a(f'v_and_b32 v{t0}, 31, v{L}')
        a(f'v_lshlrev_b32 v{t0}, 1, v{t0}')
        a('s_mul_i32 s3, s62, 1280')
        a('s_lshl_b32 s58, s63, 6')
        a('s_add_u32 s3, s3, s58')
        a(f'v_add_u32 v{t0}, s3, v{t0}')
        a(f'global_load_ushort v{xv}, v{t0}, {sp(P_X)}')
        a('s_waitcnt lgkmcnt(0)')
        for step in (16, 8, 4, 2, 1):
            for k in range(step):
                a(f'v_add_f32 v{dd+k}, v{dd+k}, v{dd+k+step}')
        self.round_bf16(dd)
        g = dd + 1; s_ = dd; e = dd + 2; r = dd + 3
        a(f'v_mov_b32 v{g}, v{dd}')
        a(f'v_mov_b32 v{e}, v{dd}')
        a(f'v_permlane32_swap_b32 v{g}, v{e}')
        a(f'v_mov_b32 v{s_}, v{g}')
        a(f'v_mov_b32 v{g}, v{e}')
        a(f'v_mul_f32 v{e}, {hex(f2u(-1.4426950408889634))}, v{g}')
        a(f'v_exp_f32 v{e}, v{e}')
        a(f'v_add_f32 v{e}, 1.0, v{e}')
        self.fdiv(r, g, e, dd + 4, dd + 5)
        self.round_bf16(r)
        a(f'v_mul_f32 v{r}, v{s_}, v{r}')
        self.round_bf16(r)
        a('s_waitcnt vmcnt(0)')
        a(f'v_lshlrev_b32 v{xv}, 16, v{xv}')
        a(f'v_add_f32 v{r}, v{xv}, v{r}')
        a(f'v_cvt_pk_bf16_f32 v{r}, v{r}, v{r}')
        self.exec_lo32()
        a(f'global_store_short v{t0}, v{r}, {sp(P_OUT)}')
        self.exec_all()
        a.label(dn)

    def kd(self, name, nv, lds_static=0):
        a = self.a
        nv = (nv + 7) // 8 * 8
        a.raw('.p2align 6')
        a.raw(f'.amdhsa_kernel {name}')
        a.raw(f'  .amdhsa_next_free_vgpr {nv}')
        a.raw('  .amdhsa_next_free_sgpr 96')
        a.raw(f'  .amdhsa_accum_offset {nv}')
        a.raw('  .amdhsa_group_segment_fixed_size 0')
        a.raw('  .amdhsa_kernarg_size 96')
        a.raw('  .amdhsa_user_sgpr_count 2')
        a.raw('  .amdhsa_user_sgpr_kernarg_segment_ptr 1')
        a.raw('  .amdhsa_system_sgpr_workgroup_id_x 1')
        a.raw('.end_amdhsa_kernel')

def wave_skip(g, cond_op, val):
    lab = g.lab('ws')
    g.a(f'{cond_op} {S_WAVE}, {val}')
    g.a(f's_cbranch_scc1 {lab}')
    return lab

def build_multi(cfg):
    g = Gen(cfg); a = g.a
    hdr = []
    hdr.append(f'; @launch kernel=k1_kernel grid=(256,1,1) block=(512,1,1) lds={LDS_SIZE}')
    hdr.append(f'; @launch kernel=k2_kernel grid=(256,1,1) block=(512,1,1) lds={LDS_SIZE}')
    hdr.append(f'; @launch kernel=k3_kernel grid=(256,1,1) block=(512,1,1) lds={LDS_SIZE}')
    hdr.append(f'; @launch kernel=k4_kernel grid=(80,1,1) block=(512,1,1) lds={LDS_SIZE}')
    a.raw('.amdgcn_target "amdgcn-amd-amdhsa--gfx950"')
    a.raw('.text')
    g.prologue('k1_kernel', 256)
    l1 = wave_skip(g, 's_cmp_ge_u32', 4); g.ln_issue(16); a.label(l1)
    l2 = wave_skip(g, 's_cmp_ge_u32', 6); g.qpart_issue(24); a.label(l2)
    l3 = wave_skip(g, 's_cmp_ge_u32', 4); a('s_waitcnt vmcnt(5)'); g.ln_compute(16, 48); a('s_waitcnt lgkmcnt(0)'); a.label(l3)
    l4 = wave_skip(g, 's_cmp_lg_u32', 7)
    a(f's_cmp_lg_u32 {S_J}, 0'); a(f's_cbranch_scc1 {l4}')
    a(f's_lshl_b32 s3, {S_H}, 8'); a(f's_add_u32 s3, s3, {WS_CNT}')
    a('v_mov_b32 v2, s3'); a('v_mov_b32 v3, 0')
    a('s_mov_b64 exec, 1'); a(f'global_store_dword v2, v3, {sp(P_WS)}'); g.exec_all()
    a.label(l4)
    a('s_barrier')
    l5 = wave_skip(g, 's_cmp_ge_u32', 6); g.qpart_compute(24, 48); a('s_waitcnt lgkmcnt(0)'); a.label(l5)
    a('s_barrier')
    l6 = wave_skip(g, 's_cmp_ge_u32', 3); g.qpart_publish(48); a.label(l6)
    g.epilogue()
    g.prologue('k2_kernel', 256)
    g.main_setup()
    noffn = g.lab('noffn'); ffn_done = g.lab('ffn_done')
    a(f's_and_b32 s3, {S_H}, 7'); a(f's_cmp_lg_u32 s3, {S_J}'); a(f's_cbranch_scc1 {noffn}')
    a(f's_cmp_ge_u32 {S_H}, 24'); a(f's_cbranch_scc1 {noffn}')
    l1 = wave_skip(g, 's_cmp_ge_u32', 4); g.ln_issue(16); a('s_waitcnt vmcnt(0)'); g.ln_compute(16, 48); a('s_waitcnt lgkmcnt(0)'); a.label(l1)
    a('s_barrier')
    g.ffn(S_H, 64, 128, 208 - 64 + 64)
    a('s_waitcnt vmcnt(0)')
    g.main_setup()
    a.label(noffn)
    l2 = wave_skip(g, 's_cmp_ge_u32', 3); g.qgather_issue(160); a.label(l2)
    g.ring_start()
    g.slot_zero()
    l2 = wave_skip(g, 's_cmp_ge_u32', 3); g.qgather_finish(160, 24); a.label(l2)
    a('s_waitcnt lgkmcnt(0)')
    a('s_barrier')
    g.slot_minit()
    a('s_waitcnt lgkmcnt(0)')
    a('s_barrier')
    g.main_loop()
    a('s_barrier')
    l3 = wave_skip(g, 's_cmp_ge_u32', 3); g.wg_combine(48); a.label(l3)
    g.epilogue()
    g.prologue('k3_kernel', 256)
    l1 = wave_skip(g, 's_cmp_ge_u32', 5); g.wo_issue(64); a.label(l1)
    l2 = wave_skip(g, 's_cmp_ge_u32', 3); g.hop1_gather(16); a('s_waitcnt lgkmcnt(0)'); a.label(l2)
    a('s_barrier')
    l3 = wave_skip(g, 's_cmp_ge_u32', 5)
    g.proj_tile(64, 6, L_ON, 24, 96)
    a(f's_mul_i32 s3, s2, 10240'); a(f's_add_u32 s3, s3, {WS_Y}')
    g.proj_store(96, '')
    a.label(l3)
    g.epilogue()
    g.prologue('k4_kernel', 80)
    g.final('s2', 16)
    g.epilogue()
    a.raw('.section .rodata,"a"')
    g.kd('k1_kernel', 128); g.kd('k2_kernel', 256); g.kd('k3_kernel', 160); g.kd('k4_kernel', 96)
    return '\n'.join(hdr) + '\n' + '\n'.join(insert_nops(a.lines)) + '\n'

if __name__ == '__main__':
    ap = argparse.ArgumentParser()
    ap.add_argument('-o', required=True)
    ap.add_argument('--mode', default='multi')
    ap.add_argument('--big', type=int, default=4)
    ap.add_argument('--frac', type=float, default=0.875)
    args = ap.parse_args()
    cfg = dict(big=args.big, frac=args.frac)
    if args.mode == 'multi':
        open(args.o, 'w').write(build_multi(cfg))
```

```python
import sys, argparse, struct
from asmlib import Asm, insert_nops

KN = 'recurrent_scan__mha_block_cached__geglu_ffn__decode_kernel'

def f2u(x):
    return struct.unpack('<I', struct.pack('<f', x))[0]

NWG = 256
W = 8
KVBYTES = 402653184
WS_QP  = 0x400000
WS_RO  = 0x500000
WS_RM  = 0x5E0000
WS_Y   = 0x600000
WS_YF  = 0x900000
WS_CNT = 0xA00000
WS_EPOCH = 0xA10000
WS_FQ  = 0xA20000
WS_F1  = 0xA30000
WS_F2  = 0xA40000
WS_FF  = 0xA50000
S_TAG = 's71'
L_XD   = 0
L_Q    = 10240
L_HD   = 11776
L_ON   = 12800
L_RED  = 13312
L_SLOT = 22528
SLOT_SZ = 1600
L_TMP  = L_SLOT + 32 * SLOT_SZ
L_QS = L_TMP + 32768
LDS_SIZE = L_QS + 12288

S_WG = 's2'
P_X, P_K, P_V, P_WQ, P_WO, P_BX, P_WG, P_WU, P_WD, P_OUT, P_DBG, P_WS = [(16 + 2 * i) for i in range(12)]
def sp(p): return f's[{p}:{p+1}]'
S_H, S_J, S_WAVE = 's40', 's41', 's42'
S_SEL_LO, S_SEL_HI = 's68', 's69'
S_HIMASK = 's70'
V_TID, V_LANE = 0, 1
V_MASK = 9

class Gen:
    def __init__(self, cfg):
        self.cfg = cfg
        self.a = Asm()
        self.uid = 0
    def lab(self, base):
        self.uid += 1
        return f'L_{base}_{self.uid}'

    def prologue(self, name, nwg):
        a = self.a
        a.raw(f'.globl {name}')
        a.raw('.p2align 8')
        a.raw(f'.type {name},@function')
        a.raw(f'{name}:')
        self.exit_label = self.lab('exit')
        a(f's_cmp_ge_u32 s2, {nwg}')
        a(f's_cbranch_scc1 {self.exit_label}')
        a('s_load_dwordx16 s[16:31], s[0:1], 0')
        a('s_load_dwordx8 s[32:39], s[0:1], 64')
        a(f'v_and_b32 v{V_LANE}, 63, v0')
        a('v_lshrrev_b32 v2, 6, v0')
        a(f'v_readfirstlane_b32 {S_WAVE}, v2')
        a(f's_lshr_b32 {S_H}, s2, 3')
        a(f's_and_b32 {S_J}, s2, 7')
        a(f's_mov_b32 {S_SEL_LO}, 0x01000100')
        a(f's_mov_b32 {S_SEL_HI}, 0x03020302')
        a(f's_mov_b32 {S_HIMASK}, 0xffff0000')
        L = V_LANE
        a(f'v_and_b32 v2, 1, v{L}')
        a('v_cmp_eq_u32 vcc, 1, v2')
        a('v_mov_b32 v3, 0xffff')
        a(f'v_mov_b32 v4, {S_HIMASK}')
        a('v_cndmask_b32 v3, v3, v4, vcc')
        a(f'v_bfe_u32 v2, v{L}, 1, 2')
        for r in range(4):
            a(f'v_cmp_eq_u32 vcc, {r}, v2')
            a(f'v_cndmask_b32 v{V_MASK+r}, 0, v3, vcc')
        a('s_waitcnt lgkmcnt(0)')

    def epilogue(self):
        a = self.a
        a.label(self.exit_label)
        a('s_endpgm')

    def stamp(self, idx, wave=0, vt=250):
        ns = self.cfg.get('stamps', 0)
        if not ns: return
        a = self.a
        sk = self.lab('st')
        if wave is not None:
            a(f's_cmp_lg_u32 {S_WAVE}, {wave}')
            a(f's_cbranch_scc1 {sk}')
        a('s_memrealtime s[72:73]')
        a(f's_mul_i32 s74, s2, {ns*8}')
        a(f's_add_u32 s74, s74, {idx*8}')
        a('s_waitcnt lgkmcnt(0)')
        a(f'v_mov_b32 v{vt}, s74')
        a(f'v_mov_b32 v{vt+2}, s72')
        a(f'v_mov_b32 v{vt+3}, s73')
        a('s_mov_b64 s[76:77], exec')
        a('s_mov_b64 exec, 1')
        a(f'global_store_dwordx2 v{vt}, v[{vt+2}:{vt+3}], {sp(P_WS)}')
        a('s_mov_b64 exec, s[76:77]')
        a.label(sk)

    def stamp_sync(self, idx):
        ns = self.cfg.get('stamps', 0)
        if not ns: return
        self.a('s_memrealtime s[78:79]')
        self.a('s_waitcnt lgkmcnt(0)')
        self.deferred = idx
    def stamp_deferred(self, vt=250):
        ns = self.cfg.get('stamps', 0)
        if not ns: return
        a = self.a; idx = self.deferred
        sk = self.lab('st')
        a(f's_cmp_lg_u32 {S_WAVE}, 0')
        a(f's_cbranch_scc1 {sk}')
        a(f's_mul_i32 s74, s2, {ns*8}')
        a(f's_add_u32 s74, s74, {idx*8}')
        a(f'v_mov_b32 v{vt}, s74')
        a(f'v_mov_b32 v{vt+2}, s78')
        a(f'v_mov_b32 v{vt+3}, s79')
        a('s_mov_b64 s[76:77], exec')
        a('s_mov_b64 exec, 1')
        a(f'global_store_dwordx2 v{vt}, v[{vt+2}:{vt+3}], {sp(P_WS)}')
        a('s_mov_b64 exec, s[76:77]')
        a.label(sk)

    def stamp_sync_i(self, idx):
        if not self.cfg.get('stamps', 0): return
        self.a(f's_memrealtime s[{80+2*idx}:{81+2*idx}]')
        self.a('s_waitcnt lgkmcnt(0)')
    def stamp_dump(self, n):
        ns = self.cfg.get('stamps', 0)
        if not ns: return
        a = self.a
        sk = self.lab('st')
        a(f's_cmp_lg_u32 {S_WAVE}, {self.cfg.get("stampwave", 0)}')
        a(f's_cbranch_scc1 {sk}')
        a(f's_mul_i32 s74, s2, {ns*8}')
        a('s_mov_b64 exec, 1')
        for i in range(n):
            a(f'v_mov_b32 v10, s74')
            a(f'v_mov_b32 v12, s{80+2*i}')
            a(f'v_mov_b32 v13, s{81+2*i}')
            a(f'global_store_dwordx2 v10, v[12:13], {sp(P_WS)} offset:{8*i}')
            a('s_waitcnt vmcnt(0)')
        a.label(sk)
    def block_off_cur(self):
        a = self.a
        a(f's_sub_u32 {self.S_BLK}, {self.S_BLK}, 1')
        self.block_off()
        a(f's_add_u32 {self.S_BLK}, {self.S_BLK}, 1')

    def allreduce16(self, op, v):
        a = self.a
        for m in ('quad_perm:[1,0,3,2]', 'quad_perm:[2,3,0,1]', 'row_half_mirror', 'row_mirror'):
            a(f'{op}_dpp v{v}, v{v}, v{v} {m} row_mask:0xf bank_mask:0xf')
    def cross_rows(self, op, v):
        a = self.a
        for i in range(4):
            a(f'v_readlane_b32 s{58+i}, v{v}, {16*i}')
        a(f'v_mov_b32 v{v}, s58')
        for i in range(1, 4):
            a(f'{op} v{v}, s{58+i}, v{v}')
    def wave_sum(self, v):
        self.allreduce16('v_add_f32', v)
        self.cross_rows('v_add_f32', v)
    def round_bf16(self, v):
        a = self.a
        a(f'v_cvt_pk_bf16_f32 v{v}, v{v}, v{v}')
        a(f'v_and_b32 v{v}, {S_HIMASK}, v{v}')
    def fdiv(self, d, n, den, t0, t1):
        a = self.a
        a(f'v_rcp_f32 v{t0}, v{den}')
        a(f'v_mul_f32 v{t1}, v{n}, v{t0}')
        a(f'v_fma_f32 v{d}, -v{t1}, v{den}, v{n}')
        a(f'v_fma_f32 v{d}, v{d}, v{t0}, v{t1}')

    def ln_issue(self, vx):
        a = self.a
        a(f's_mul_i32 s3, {S_WAVE}, 1280')
        a(f'v_lshlrev_b32 v2, 2, v{V_LANE}')
        a('v_add_u32 v2, s3, v2')
        for k in range(5):
            a(f'global_load_dword v{vx+k}, v2, {sp(P_X)} offset:{256*k}')
    def ln_compute(self, vx, vt):
        a = self.a
        f = [vt + i for i in range(10)]
        t0, t1, t2, t3, t4 = vt + 10, vt + 11, vt + 12, vt + 13, vt + 14
        for k in range(5):
            a(f'v_lshlrev_b32 v{f[2*k]}, 16, v{vx+k}')
            a(f'v_and_b32 v{f[2*k+1]}, {S_HIMASK}, v{vx+k}')
        a(f'v_add_f32 v{t0}, v{f[0]}, v{f[1]}')
        for i in range(2, 10):
            a(f'v_add_f32 v{t0}, v{t0}, v{f[i]}')
        self.wave_sum(t0)
        a(f'v_mul_f32 v{t0}, {hex(f2u(1.0/640))}, v{t0}')
        a(f'v_sub_f32 v{t2}, v{f[0]}, v{t0}')
        a(f'v_mul_f32 v{t1}, v{t2}, v{t2}')
        for i in range(1, 10):
            a(f'v_sub_f32 v{t2}, v{f[i]}, v{t0}')
            a(f'v_fma_f32 v{t1}, v{t2}, v{t2}, v{t1}')
        self.wave_sum(t1)
        a(f'v_mul_f32 v{t1}, {hex(f2u(1.0/640))}, v{t1}')
        self.round_bf16(t0)
        self.round_bf16(t1)
        a(f'v_add_f32 v{t1}, {hex(f2u(1e-5))}, v{t1}')
        self.round_bf16(t1)
        a(f'v_sqrt_f32 v{t1}, v{t1}')
        self.round_bf16(t1)
        for i in range(10):
            a(f'v_sub_f32 v{f[i]}, v{f[i]}, v{t0}')
        for k in range(5):
            a(f'v_cvt_pk_bf16_f32 v{t2}, v{f[2*k]}, v{f[2*k+1]}')
            a(f'v_lshlrev_b32 v{f[2*k]}, 16, v{t2}')
            a(f'v_and_b32 v{f[2*k+1]}, {S_HIMASK}, v{t2}')
        a(f'v_rcp_f32 v{t0}, v{t1}')
        for i in range(10):
            a(f'v_mul_f32 v{t2}, v{f[i]}, v{t0}')
            a(f'v_fma_f32 v{t3}, -v{t2}, v{t1}, v{f[i]}')
            a(f'v_fma_f32 v{f[i]}, v{t3}, v{t0}, v{t2}')
        a(f's_mul_i32 s3, {S_WAVE}, 2560')
        a(f'v_lshlrev_b32 v{t4}, 3, v{V_LANE}')
        a(f'v_add_u32 v{t4}, s3, v{t4}')
        for k in range(5):
            a(f'v_cvt_pk_bf16_f32 v{t1}, v{f[2*k]}, v{f[2*k+1]}')
            a(f'v_perm_b32 v{t2}, v{t1}, v{t1}, {S_SEL_LO}')
            a(f'v_perm_b32 v{t3}, v{t1}, v{t1}, {S_SEL_HI}')
            a(f'ds_write_b64 v{t4}, v[{t2}:{t3}] offset:{L_XD + 512*k}')

    def sel_operand(self, dst, src):
        for r in range(4):
            self.a(f'v_and_b32 v{dst+r}, v{src}, v{V_MASK+r}')

    def qpart_issue(self, vw):
        a = self.a
        a(f's_cmp_ge_u32 {S_WAVE}, 3')
        a('s_cselect_b32 s59, 1, 0')
        a('s_mul_i32 s3, s59, 3')
        a(f's_sub_u32 s58, {S_WAVE}, s3')
        a(f's_mul_i32 s3, {S_J}, 80')
        a('s_mul_i32 s60, s59, 40')
        a('s_add_u32 s3, s3, s60')
        a('s_mul_i32 s3, s3, 12288')
        a(f's_mul_i32 s60, {S_H}, 384')
        a('s_add_u32 s3, s3, s60')
        a('s_lshl_b32 s60, s58, 7')
        a('s_add_u32 s3, s3, s60')
        a(f'v_lshrrev_b32 v2, 3, v{V_LANE}')
        a('v_mul_u32_u24 v2, 12288, v2')
        a(f'v_and_b32 v3, 7, v{V_LANE}')
        a('v_lshlrev_b32 v3, 4, v3')
        a('v_add_u32 v2, v2, v3')
        a('v_add_u32 v2, s3, v2')
        for t in range(5):
            a(f'global_load_dwordx4 v[{vw+4*t}:{vw+4*t+3}], v2, {sp(P_WQ)}')
            if t < 4:
                a('v_add_u32 v2, 98304, v2')
        a('s_mov_b32 s62, s58')
        a('s_mov_b32 s63, s59')
    def qpart_compute(self, vw, vt):
        a = self.a
        acc = vt; aop = vt + 16; xv = vt + 20; ad = vt + 40
        for i in range(16):
            a(f'v_mov_b32 v{acc+i}, 0')
        a(f's_mul_i32 s3, {S_J}, 80')
        a('s_mul_i32 s60, s63, 40')
        a('s_add_u32 s3, s3, s60')
        a('s_lshl_b32 s3, s3, 2')
        a(f'v_lshrrev_b32 v{ad}, 3, v{V_LANE}')
        a(f'v_lshlrev_b32 v{ad}, 2, v{ad}')
        a(f'v_add_u32 v{ad}, s3, v{ad}')
        for t in range(5):
            for b in range(4):
                a(f'ds_read_b32 v{xv+t*4+b}, v{ad} offset:{L_XD + b*2560 + 32*t}')
        a('s_waitcnt lgkmcnt(0)')
        for t in range(5):
            a(f's_waitcnt vmcnt({4-t})') if self.cfg.get('qpart_vm', True) else None
            for b in range(4):
                self.sel_operand(aop, xv + t*4 + b)
                a(f'v_mfma_f32_16x16x32_bf16 v[{acc+4*b}:{acc+4*b+3}], v[{aop}:{aop+3}], v[{vw+4*t}:{vw+4*t+3}], v[{acc+4*b}:{acc+4*b+3}]')
        a(f'v_lshrrev_b32 v{ad}, 5, v{V_LANE}')
        a(f'v_mul_u32_u24 v{ad}, 3072, v{ad}')
        a(f'v_and_b32 v{xv}, 7, v{V_LANE}')
        a(f'v_lshlrev_b32 v{xv}, 5, v{xv}')
        a(f'v_add_u32 v{ad}, v{ad}, v{xv}')
        a(f'v_bfe_u32 v{xv}, v{V_LANE}, 4, 1')
        a(f'v_lshlrev_b32 v{xv}, 4, v{xv}')
        a(f'v_add_u32 v{ad}, v{ad}, v{xv}')
        a('s_mul_i32 s3, s63, 6144')
        a('s_lshl_b32 s60, s62, 8')
        a('s_add_u32 s3, s3, s60')
        a(f's_add_u32 s3, s3, {L_QS}')
        a(f'v_add_u32 v{ad}, s3, v{ad}')
        self.valid_exec_on()
        for b in range(4):
            a(f'ds_write_b128 v{ad}, v[{acc+4*b}:{acc+4*b+3}] offset:{768*b}')
        self.exec_all()
    def valid_exec_on(self):
        self.a('s_mov_b32 exec_lo, 0x00ff00ff')
        self.a('s_mov_b32 exec_hi, 0xff00ff00')
    def exec_lo32(self):
        self.a('s_mov_b32 exec_lo, -1')
        self.a('s_mov_b32 exec_hi, 0')
    def exec_all(self):
        self.a('s_mov_b64 exec, -1')
    def qpart_publish(self, vt, pol=''):
        a = self.a
        a(f'v_lshlrev_b32 v{vt}, 4, v0')
        a(f'v_add_u32 v{vt+1}, {L_QS}, v{vt}')
        for s in range(4):
            a(f'ds_read_b128 v[{vt+4+4*s}:{vt+7+4*s}], v{vt+1} offset:{3072*s}')
        a('s_waitcnt lgkmcnt(0)')
        for i in range(4):
            a(f'v_add_f32 v{vt+4+i}, v{vt+4+i}, v{vt+8+i}')
            a(f'v_add_f32 v{vt+12+i}, v{vt+12+i}, v{vt+16+i}')
        for i in range(4):
            a(f'v_add_f32 v{vt+4+i}, v{vt+4+i}, v{vt+12+i}')
        a(f's_mul_i32 s3, s2, 3072')
        a(f's_add_u32 s3, s3, {WS_QP}')
        a(f'v_add_u32 v{vt}, s3, v{vt}')
        a(f'global_store_dwordx4 v{vt}, v[{vt+4}:{vt+7}], {sp(P_WS)} {pol}')

    def qgather_issue(self, vt, pol=''):
        a = self.a
        a(f'v_lshlrev_b32 v{vt}, 4, v0')
        a(f's_mul_i32 s3, {S_H}, {8*3072}')
        a(f's_add_u32 s3, s3, {WS_QP}')
        a(f'v_add_u32 v{vt+1}, s3, v{vt}')
        for i in range(8):
            a(f'global_load_dwordx4 v[{vt+4+4*i}:{vt+7+4*i}], v{vt+1}, {sp(P_WS)} {pol}')
            if i < 7:
                a(f'v_add_u32 v{vt+1}, 3072, v{vt+1}')
    def qgather_finish(self, vt, vm):
        a = self.a
        a(f's_waitcnt vmcnt({vm})')
        for step in (16, 8, 4):
            for k in range(0, step, 4):
                for i in range(4):
                    a(f'v_add_f32 v{vt+4+k+i}, v{vt+4+k+i}, v{vt+4+k+step+i}')
        a(f'v_cvt_pk_bf16_f32 v{vt+2}, v{vt+4}, v{vt+5}')
        a(f'v_cvt_pk_bf16_f32 v{vt+3}, v{vt+6}, v{vt+7}')
        a(f'v_lshlrev_b32 v{vt}, 3, v0')
        a(f'ds_write_b64 v{vt}, v[{vt+2}:{vt+3}] offset:{L_Q}')

    def ffn(self, S_F, vd, vg, vt, pol=''):
        a = self.a
        L = V_LANE
        skip = self.lab('ffn_nodown')
        a(f's_cmp_ge_u32 {S_WAVE}, 5')
        a(f's_cbranch_scc1 {skip}')
        a(f'v_lshrrev_b32 v2, 4, v{L}')
        a('v_mul_u32_u24 v2, 1280, v2')
        a(f'v_and_b32 v3, 15, v{L}')
        a('v_lshlrev_b32 v3, 4, v3')
        a('v_add_u32 v2, v2, v3')
        a(f's_mul_i32 s3, {S_F}, {64*1280}')
        a(f's_lshl_b32 s58, {S_WAVE}, 8')
        a('s_add_u32 s3, s3, s58')
        a('v_add_u32 v2, s3, v2')
        for t in range(16):
            a(f'global_load_dwordx4 v[{vd+4*t}:{vd+4*t+3}], v2, {sp(P_WD)}')
            if t < 15:
                a('v_add_u32 v2, 5120, v2')
        a.label(skip)
        a(f'v_lshrrev_b32 v2, 3, v{L}')
        a('v_mul_u32_u24 v2, 3072, v2')
        a(f'v_and_b32 v3, 7, v{L}')
        a('v_lshlrev_b32 v3, 4, v3')
        a('v_add_u32 v2, v2, v3')
        a(f's_mul_i32 s3, {S_WAVE}, {80*3072}')
        a(f's_lshl_b32 s58, {S_F}, 7')
        a('s_add_u32 s3, s3, s58')
        a('v_add_u32 v2, s3, v2')
        for t in range(10):
            a(f'global_load_dwordx4 v[{vg+8*t}:{vg+8*t+3}], v2, {sp(P_WG)}')
            a(f'global_load_dwordx4 v[{vg+8*t+4}:{vg+8*t+7}], v2, {sp(P_WU)}')
            if t < 9:
                a('v_add_u32 v2, 24576, v2')
        accg = vt; accu = vt + 16; aop = vt + 32; xv = vt + 36; ad = vt + 40
        for i in range(32):
            a(f'v_mov_b32 v{vt+i}, 0')
        a(f's_mul_i32 s3, {S_WAVE}, 320')
        a(f'v_lshrrev_b32 v{ad}, 3, v{L}')
        a(f'v_lshlrev_b32 v{ad}, 2, v{ad}')
        a(f'v_add_u32 v{ad}, s3, v{ad}')
        for t in range(10):
            for b in range(4):
                a(f'ds_read_b32 v{xv+b}, v{ad} offset:{L_XD + b*2560 + 32*t}')
            a(f's_waitcnt vmcnt({2*(9-t)}) lgkmcnt(0)')
            for b in range(4):
                self.sel_operand(aop, xv + b)
                a(f'v_mfma_f32_16x16x32_bf16 v[{accg+4*b}:{accg+4*b+3}], v[{aop}:{aop+3}], v[{vg+8*t}:{vg+8*t+3}], v[{accg+4*b}:{accg+4*b+3}]')
                a(f'v_mfma_f32_16x16x32_bf16 v[{accu+4*b}:{accu+4*b+3}], v[{aop}:{aop+3}], v[{vg+8*t+4}:{vg+8*t+7}], v[{accu+4*b}:{accu+4*b+3}]')
        a(f'v_lshrrev_b32 v{ad}, 5, v{L}')
        a(f'v_lshlrev_b32 v{ad}, 11, v{ad}')
        a(f'v_and_b32 v{xv}, 7, v{L}')
        a(f'v_lshlrev_b32 v{xv}, 5, v{xv}')
        a(f'v_add_u32 v{ad}, v{ad}, v{xv}')
        a(f'v_bfe_u32 v{xv}, v{L}, 4, 1')
        a(f'v_lshlrev_b32 v{xv}, 4, v{xv}')
        a(f'v_add_u32 v{ad}, v{ad}, v{xv}')
        a(f's_lshl_b32 s3, {S_WAVE}, 12')
        a(f's_add_u32 s3, s3, {L_TMP}')
        a(f'v_add_u32 v{ad}, s3, v{ad}')
        self.valid_exec_on()
        for b in range(4):
            a(f'ds_write_b128 v{ad}, v[{accg+4*b}:{accg+4*b+3}] offset:{256*b}')
            a(f'ds_write_b128 v{ad}, v[{accu+4*b}:{accu+4*b+3}] offset:{1024+256*b}')
        self.exec_all()
        a('s_waitcnt lgkmcnt(0)')
        a('s_barrier')
        skip2 = self.lab('ffn_noact')
        a(f's_cmp_ge_u32 {S_WAVE}, 4')
        a(f's_cbranch_scc1 {skip2}')
        a(f's_lshl_b32 s3, {S_WAVE}, 8')
        a(f's_add_u32 s3, s3, {L_TMP}')
        a(f'v_lshlrev_b32 v{ad}, 2, v{L}')
        a(f'v_add_u32 v{ad}, s3, v{ad}')
        for s in range(16):
            a(f'ds_read_b32 v{vt+s}, v{ad} offset:{2048*s}')
            a(f'ds_read_b32 v{vt+16+s}, v{ad} offset:{2048*s+1024}')
        a('s_waitcnt lgkmcnt(0)')
        for base in (vt, vt + 16):
            for step in (8, 4, 2, 1):
                for k in range(step):
                    a(f'v_add_f32 v{base+k}, v{base+k}, v{base+k+step}')
        g = vt; u = vt + 16; t0 = vt + 1; t1 = vt + 2; t2 = vt + 3
        self.round_bf16(g); self.round_bf16(u)
        a(f'v_mul_f32 v{t0}, v{g}, v{g}')
        a(f'v_mul_f32 v{t0}, v{t0}, v{g}')
        a(f'v_mov_b32 v{t1}, {hex(f2u(0.044715))}')
        a(f'v_fma_f32 v{t0}, v{t0}, v{t1}, v{g}')
        a(f'v_mul_f32 v{t0}, {hex(f2u(0.7978845608028654 * 2.0 * 1.4426950408889634))}, v{t0}')
        a(f'v_exp_f32 v{t0}, v{t0}')
        a(f'v_add_f32 v{t0}, 1.0, v{t0}')
        a(f'v_rcp_f32 v{t0}, v{t0}')
        a(f'v_fma_f32 v{t0}, v{t0}, -2.0, 1.0')
        a(f'v_add_f32 v{t0}, 1.0, v{t0}')
        a(f'v_mul_f32 v{t1}, 0.5, v{g}')
        a(f'v_mul_f32 v{t0}, v{t0}, v{t1}')
        self.round_bf16(t0)
        a(f'v_mul_f32 v{t0}, v{t0}, v{u}')
        a(f'v_cvt_pk_bf16_f32 v{t0}, v{t0}, v{t0}')
        a(f's_lshl_b32 s3, {S_WAVE}, 8')
        a(f'v_lshlrev_b32 v{ad}, 2, v{L}')
        a(f'v_add_u32 v{ad}, s3, v{ad}')
        a(f'ds_write_b32 v{ad}, v{t0} offset:{L_HD}')
        a.label(skip2)
        a('s_waitcnt lgkmcnt(0)')
        a('s_barrier')
        skip3 = self.lab('ffn_nodown2')
        a(f's_cmp_ge_u32 {S_WAVE}, 5')
        a(f's_cbranch_scc1 {skip3}')
        self.proj_tile(vd, 16, L_HD, 64, vt)
        a(f's_mul_i32 s3, {S_F}, 10240')
        a(f's_add_u32 s3, s3, {WS_YF}')
        self.proj_store(vt, pol)
        a.label(skip3)

    def proj_tile(self, vd, nt, ltab, tabw, vt):
        a = self.a
        L = V_LANE
        acc = vt; aop = vt + 8; xv = vt + 12; ad = vt + 44
        for i in range(8):
            a(f'v_mov_b32 v{acc+i}, 0')
        a(f'v_bfe_u32 v{ad}, v{L}, 3, 1')
        a(f'v_mul_u32_u24 v{ad}, {tabw*4}, v{ad}')
        a(f'v_lshrrev_b32 v{xv}, 4, v{L}')
        a(f'v_lshlrev_b32 v{xv}, 2, v{xv}')
        a(f'v_add_u32 v{ad}, v{ad}, v{xv}')
        for t in range(nt):
            for P in range(2):
                a(f'ds_read_b32 v{xv+2*t+P}, v{ad} offset:{ltab + 2*P*tabw*4 + 16*t}')
        a('s_waitcnt vmcnt(0) lgkmcnt(0)')
        for t in range(nt):
            for P in range(2):
                self.sel_operand(aop, xv + 2*t + P)
                a(f'v_mfma_f32_16x16x32_bf16 v[{acc+4*P}:{acc+4*P+3}], v[{aop}:{aop+3}], v[{vd+4*t}:{vd+4*t+3}], v[{acc+4*P}:{acc+4*P+3}]')
    def proj_store(self, vt, pol):
        a = self.a
        L = V_LANE
        ad = vt + 44; x = vt + 12
        a(f'v_lshrrev_b32 v{ad}, 5, v{L}')
        a(f'v_mul_u32_u24 v{ad}, 2560, v{ad}')
        a(f'v_and_b32 v{x}, 15, v{L}')
        a(f'v_lshlrev_b32 v{x}, 5, v{x}')
        a(f'v_add_u32 v{ad}, v{ad}, v{x}')
        a(f'v_bfe_u32 v{x}, v{L}, 4, 1')
        a(f'v_lshlrev_b32 v{x}, 4, v{x}')
        a(f'v_add_u32 v{ad}, v{ad}, v{x}')
        a(f's_lshl_b32 s58, {S_WAVE}, 9')
        a('s_add_u32 s3, s3, s58')
        a(f'v_add_u32 v{ad}, s3, v{ad}')
        a(f'global_store_dwordx4 v{ad}, v[{vt}:{vt+3}], {sp(P_WS)} {pol}')
        a(f'v_add_u32 v{ad}, 5120, v{ad}')
        a(f'global_store_dwordx4 v{ad}, v[{vt+4}:{vt+7}], {sp(P_WS)} {pol}')

    V_OFF = 2
    V_ZERO, V_ONE, V_CLAIM = 6, 7, 8
    V_M, V_ML, V_L = 13, 14, 15
    V_Q = 16
    V_ACC = 28
    V_S = 40
    V_T = 44
    V_A = 48
    V_K = 64
    V_V = 112
    S_BLK, S_REM, S_OFFN, S_VALN, S_BCUR, S_BACC, S_BNXT, S_HOFF = 's43', 's44', 's45', 's46', 's47', 's48', 's49', 's50'
    S_CNT = 52
    S_SCALE, S_LOG2E = 's66', 's67'

    def main_consts(self):
        c = self.cfg
        self.N = 4
        self.BB = self.N * 3072
        self.BPB = 3145728 // self.BB
        self.NBLK = 4 * self.BPB
        self.BIG = c.get('big', 4)
        self.NBIG = int(self.NBLK * c.get('frac', 0.875)) // self.BIG
        self.NW = 8 * W

    def chunk_decode(self, c):
        a = self.a
        a(f's_mul_i32 s58, {c}, {self.BIG}')
        a(f's_sub_u32 s59, {c}, {self.NBIG}')
        a(f's_add_u32 s59, s59, {self.NBIG*self.BIG}')
        a(f's_cmp_lt_u32 {c}, {self.NBIG}')
        a(f's_cselect_b32 {self.S_REM}, {self.BIG}, 1')
        a(f's_cselect_b32 {self.S_BLK}, s58, s59')
    def block_off(self):
        a = self.a
        a(f's_lshr_b32 {self.S_BNXT}, {self.S_BLK}, 8')
        a(f's_mul_i32 s58, {self.S_BNXT}, 100663296')
        a(f's_and_b32 s59, {self.S_BLK}, 255')
        a(f's_mul_i32 s59, s59, {self.BB}')
        a(f's_add_u32 {self.S_OFFN}, s58, s59')
        a(f's_add_u32 {self.S_OFFN}, {self.S_OFFN}, {self.S_HOFF}')
    def kv_loads(self, r, srd, g):
        pol = self.cfg.get('pol', 'nt')
        for j in range(3):
            self.a(f'buffer_load_dwordx4 v[{r+4*j}:{r+4*j+3}], v{self.V_OFF+g}, s[{srd}:{srd+3}], {self.S_OFFN} offen offset:{128*j} {pol}')

    def main_setup(self):
        a = self.a
        self.main_consts()
        L = V_LANE
        a(f's_mov_b32 s4, s{P_K}')
        a(f's_and_b32 s5, s{P_K+1}, 0xffff')
        a(f's_mov_b32 s6, {KVBYTES}')
        a('s_mov_b32 s7, 0x20000')
        a(f's_mov_b32 s8, s{P_V}')
        a(f's_and_b32 s9, s{P_V+1}, 0xffff')
        a(f's_mov_b32 s10, {KVBYTES}')
        a('s_mov_b32 s11, 0x20000')
        a(f's_mov_b32 s12, s{P_K}')
        a(f's_and_b32 s13, s{P_K+1}, 0xffff')
        a('s_mov_b32 s14, 0')
        a('s_mov_b32 s15, 0x20000')
        o = self.V_OFF
        a(f'v_lshrrev_b32 v{o}, 3, v{L}')
        a(f'v_mul_u32_u24 v{o}, 384, v{o}')
        a(f'v_and_b32 v{o+1}, 7, v{L}')
        a(f'v_lshlrev_b32 v{o+1}, 4, v{o+1}')
        a(f'v_add_u32 v{o}, v{o}, v{o+1}')
        for g in range(1, self.N):
            a(f'v_add_u32 v{o+g}, {3072*g}, v{o}')
        a(f'v_mov_b32 v{self.V_ZERO}, 0')
        a(f'v_mov_b32 v{self.V_ONE}, 1')
        a(f's_mul_i32 {self.S_HOFF}, {S_H}, 3145728')
        a(f's_lshl_b32 s58, {S_H}, 8')
        a(f's_add_u32 s58, s58, {WS_CNT}')
        a(f's_add_u32 s{self.S_CNT}, s{P_WS}, s58')
        a(f's_addc_u32 s{self.S_CNT+1}, s{P_WS+1}, 0')
        a(f's_mov_b32 {self.S_SCALE}, {hex(f2u(192 ** -0.5))}')
        a(f's_mov_b32 {self.S_LOG2E}, {hex(f2u(1.4426950408889634))}')

    def ring_start(self):
        a = self.a
        a(f's_lshl_b32 s60, {S_J}, 3')
        a(f's_add_u32 s60, s60, {S_WAVE}')
        self.chunk_decode('s60')
        self.block_off()
        for g in range(self.N): self.kv_loads(self.V_K + 12 * g, 4, g)
        for g in range(self.N): self.kv_loads(self.V_V + 12 * g, 8, g)
        a(f's_mov_b32 {self.S_BCUR}, {self.S_BNXT}')
        a(f's_add_u32 {self.S_BLK}, {self.S_BLK}, 1')
        a(f's_sub_u32 {self.S_REM}, {self.S_REM}, 1')

    def slot_zero(self):
        a = self.a
        t = self.V_S
        for i in range(4):
            a(f'v_mov_b32 v{t+i}, 0')
        a(f'v_lshlrev_b32 v{self.V_T}, 4, v0')
        a(f'v_add_u32 v{self.V_T}, {L_SLOT}, v{self.V_T}')
        for k in range(6):
            a(f'ds_write_b128 v{self.V_T}, v[{t}:{t+3}] offset:{8192*k}')
        sk = self.lab('sz')
        a(f's_cmp_ge_u32 {S_WAVE}, 2')
        a(f's_cbranch_scc1 {sk}')
        a(f'ds_write_b128 v{self.V_T}, v[{t}:{t+3}] offset:{8192*6}')
        a.label(sk)
    def slot_minit(self):
        a = self.a
        sk = self.lab('sm')
        a(f's_cmp_lg_u32 {S_WAVE}, 0')
        a(f's_cbranch_scc1 {sk}')
        a(f'v_mul_u32_u24 v{self.V_T}, {SLOT_SZ}, v{V_LANE}')
        a(f'v_mov_b32 v{self.V_T+1}, {hex(f2u(-1e30))}')
        self.exec_lo32()
        a(f'ds_write_b32 v{self.V_T}, v{self.V_T+1} offset:{L_SLOT + 1536}')
        self.exec_all()
        a.label(sk)

    def load_q(self, sb):
        a = self.a
        t = self.V_T
        a(f's_mul_i32 s58, {sb}, 384')
        a(f'v_and_b32 v{t}, 7, v{V_LANE}')
        a(f'v_lshlrev_b32 v{t}, 4, v{t}')
        a(f'v_add_u32 v{t}, s58, v{t}')
        for c in range(3):
            a(f'ds_read_b128 v[{self.V_Q+4*c}:{self.V_Q+4*c+3}], v{t} offset:{L_Q + 128*c}')
    def reset_acc(self):
        a = self.a
        for i in range(12):
            a(f'v_mov_b32 v{self.V_ACC+i}, 0')
        a(f'v_mov_b32 v{self.V_L}, 0')
        a(f'v_mov_b32 v{self.V_M}, {hex(f2u(-1e30))}')
        a(f'v_mov_b32 v{self.V_ML}, {hex(f2u(-1e30))}')
    def flush(self):
        a = self.a
        L = V_LANE
        t = self.V_T
        a(f'v_add_f32_dpp v{self.V_L}, v{self.V_L}, v{self.V_L} row_ror:8 row_mask:0xf bank_mask:0xf')
        self.cross_rows('v_add_f32', self.V_L)
        a(f's_lshl_b32 s58, {self.S_BACC}, 3')
        a(f's_add_u32 s58, s58, {S_WAVE}')
        a(f's_mul_i32 s58, s58, {SLOT_SZ}')
        a(f's_add_u32 s58, s58, {L_SLOT}')
        a(f'v_lshrrev_b32 v{t}, 5, v{L}')
        a(f'v_mul_u32_u24 v{t}, 768, v{t}')
        a(f'v_and_b32 v{t+1}, 7, v{L}')
        a(f'v_lshlrev_b32 v{t+1}, 5, v{t+1}')
        a(f'v_add_u32 v{t}, v{t}, v{t+1}')
        a(f'v_bfe_u32 v{t+1}, v{L}, 4, 1')
        a(f'v_lshlrev_b32 v{t+1}, 4, v{t+1}')
        a(f'v_add_u32 v{t}, v{t}, v{t+1}')
        a(f'v_add_u32 v{t}, s58, v{t}')
        self.valid_exec_on()
        for c in range(3):
            a(f'ds_write_b128 v{t}, v[{self.V_ACC+4*c}:{self.V_ACC+4*c+3}] offset:{256*c}')
        a('s_mov_b64 exec, 1')
        a(f'v_mov_b32 v{t+2}, s58')
        a(f'ds_write_b64 v{t+2}, v[{self.V_ML}:{self.V_ML+1}] offset:1536')
        self.exec_all()

    def main_loop(self):
        a = self.a
        N = self.N
        T = 6 * N + 1
        K, V, Q, ACC, S, TT, AOP = self.V_K, self.V_V, self.V_Q, self.V_ACC, self.V_S, self.V_T, self.V_A
        lp, have, claim, claimed, noswitch, nomax, done = [self.lab(x) for x in ('loop', 'have', 'claim', 'claimed', 'nosw', 'nomax', 'done')]
        self.reset_acc()
        a(f's_mov_b32 {self.S_BACC}, {self.S_BCUR}')
        self.load_q(self.S_BACC)
        a('s_waitcnt lgkmcnt(0)')
        assert self.BIG > 1
        a.label(lp)
        a(f's_waitcnt vmcnt({T-1})')
        a(f's_cmp_eq_u32 {self.S_REM}, 0')
        a(f's_cbranch_scc0 {have}')
        a(f'v_readfirstlane_b32 s60, v{self.V_CLAIM}')
        a(f's_add_u32 s60, s60, {self.NW}')
        self.chunk_decode('s60')
        a.label(have)
        self.block_off()
        a(f's_cmp_lt_u32 {self.S_BLK}, {self.NBLK}')
        a(f's_cselect_b32 s6, {KVBYTES}, 0')
        a(f's_cselect_b32 s10, {KVBYTES}, 0')
        a(f's_cselect_b32 {self.S_VALN}, 1, 0')
        a(f's_add_u32 {self.S_BLK}, {self.S_BLK}, 1')
        a(f's_sub_u32 {self.S_REM}, {self.S_REM}, 1')
        a(f's_cmp_eq_u32 {self.S_REM}, 0')
        a(f's_cbranch_scc1 {claim}')
        a(f'buffer_load_dword v{self.V_CLAIM}, v{self.V_ZERO}, s[12:15], 0 offen')
        a(f's_branch {claimed}')
        a.label(claim)
        a('s_mov_b64 exec, 1')
        a(f'global_atomic_add v{self.V_CLAIM}, v{self.V_ZERO}, v{self.V_ONE}, s[{self.S_CNT}:{self.S_CNT+1}] sc0')
        self.exec_all()
        a.label(claimed)
        a(f's_cmp_eq_u32 {self.S_BCUR}, {self.S_BACC}')
        a(f's_cbranch_scc1 {noswitch}')
        self.flush()
        self.reset_acc()
        a(f's_mov_b32 {self.S_BACC}, {self.S_BCUR}')
        self.load_q(self.S_BACC)
        a('s_waitcnt lgkmcnt(0)')
        a.label(noswitch)
        for g in range(N):
            a(f's_waitcnt vmcnt({T-3})')
            k = K + 12 * g
            a(f'v_dot2_f32_bf16 v{S+g}, v{k}, v{Q}, 0')
            for i in range(1, 12):
                a(f'v_dot2_f32_bf16 v{S+g}, v{k+i}, v{Q+i}, v{S+g}')
            self.kv_loads(k, 4, g)
        for m in ('quad_perm:[1,0,3,2]', 'quad_perm:[2,3,0,1]', 'row_half_mirror'):
            for g in range(N):
                a(f'v_add_f32_dpp v{S+g}, v{S+g}, v{S+g} {m} row_mask:0xf bank_mask:0xf')
        a(f'v_cvt_pk_bf16_f32 v{TT}, v{S}, v{S+1}')
        a(f'v_cvt_pk_bf16_f32 v{TT+1}, v{S+2}, v{S+3}')
        a(f'v_lshlrev_b32 v{S}, 16, v{TT}')
        a(f'v_and_b32 v{S+1}, {S_HIMASK}, v{TT}')
        a(f'v_lshlrev_b32 v{S+2}, 16, v{TT+1}')
        a(f'v_and_b32 v{S+3}, {S_HIMASK}, v{TT+1}')
        for g in range(N):
            a(f'v_mul_f32 v{S+g}, {self.S_SCALE}, v{S+g}')
        a(f'v_cvt_pk_bf16_f32 v{TT}, v{S}, v{S+1}')
        a(f'v_cvt_pk_bf16_f32 v{TT+1}, v{S+2}, v{S+3}')
        a(f'v_lshlrev_b32 v{S}, 16, v{TT}')
        a(f'v_and_b32 v{S+1}, {S_HIMASK}, v{TT}')
        a(f'v_lshlrev_b32 v{S+2}, 16, v{TT+1}')
        a(f'v_and_b32 v{S+3}, {S_HIMASK}, v{TT+1}')
        a(f'v_max3_f32 v{TT}, v{S}, v{S+1}, v{S+2}')
        a(f'v_max_f32 v{TT}, v{TT}, v{S+3}')
        a(f'v_cmp_gt_f32 vcc, v{TT}, v{self.V_M}')
        a(f's_cbranch_vccz {nomax}')
        a(f'v_max_f32_dpp v{TT}, v{TT}, v{TT} row_ror:8 row_mask:0xf bank_mask:0xf')
        self.cross_rows('v_max_f32', TT)
        a(f'v_max_f32 v{self.V_M}, v{self.V_M}, v{TT}')
        a(f'v_mul_f32 v{TT+1}, {self.S_LOG2E}, v{self.V_M}')
        a(f'v_sub_f32 v{TT+2}, v{self.V_ML}, v{TT+1}')
        a(f'v_exp_f32 v{TT+2}, v{TT+2}')
        a(f'v_mov_b32 v{self.V_ML}, v{TT+1}')
        for i in range(12):
            a(f'v_mul_f32 v{ACC+i}, v{ACC+i}, v{TT+2}')
        a(f'v_mul_f32 v{self.V_L}, v{self.V_L}, v{TT+2}')
        a.label(nomax)
        for g in range(N):
            a(f'v_fma_f32 v{S+g}, v{S+g}, {self.S_LOG2E}, -v{self.V_ML}')
        for g in range(N):
            a(f'v_exp_f32 v{S+g}, v{S+g}')
        for g in range(N):
            a(f'v_add_f32 v{self.V_L}, v{self.V_L}, v{S+g}')
            a(f'v_cvt_pk_bf16_f32 v{TT+g}, v{S+g}, v{S+g}')
        for g in range(N):
            self.sel_operand(AOP + 4 * g, TT + g)
        for g in range(N):
            a(f's_waitcnt vmcnt({T-3})')
            v = V + 12 * g
            for c in range(3):
                a(f'v_mfma_f32_16x16x32_bf16 v[{ACC+4*c}:{ACC+4*c+3}], v[{AOP+4*g}:{AOP+4*g+3}], v[{v+4*c}:{v+4*c+3}], v[{ACC+4*c}:{ACC+4*c+3}]')
            self.kv_loads(v, 8, g)
        a(f's_mov_b32 {self.S_BCUR}, {self.S_BNXT}')
        a(f's_cmp_eq_u32 {self.S_VALN}, 1')
        a(f's_cbranch_scc1 {lp}')
        a('s_waitcnt vmcnt(0)')
        self.flush()
        a('s_waitcnt lgkmcnt(0)')

    def wg_combine(self, vt, pol=''):
        a = self.a
        b = vt; ad = vt + 1; M = vt + 2; lsum = vt + 3
        ml = vt + 4
        o = vt + 20
        d = vt + 24
        a(f'v_mul_u32_u24 v{b}, 1366, v0')
        a(f'v_lshrrev_b32 v{b}, 16, v{b}')
        a(f'v_mul_u32_u24 v{ad}, {8*SLOT_SZ}, v{b}')
        a(f'v_add_u32 v{ad}, {L_SLOT}, v{ad}')
        for w in range(8):
            a(f'ds_read_b64 v[{ml+2*w}:{ml+2*w+1}], v{ad} offset:{SLOT_SZ*w + 1536}')
        a(f'v_mul_u32_u24 v{M}, 48, v{b}')
        a(f'v_sub_u32 v{M}, v0, v{M}')
        a(f'v_lshlrev_b32 v{M}, 4, v{M}')
        a(f'v_add_u32 v{lsum}, v{ad}, v{M}')
        for w in range(8):
            for p in range(2):
                a(f'ds_read_b128 v[{d+(2*w+p)*4}:{d+(2*w+p)*4+3}], v{lsum} offset:{SLOT_SZ*w + 768*p}')
        a('s_waitcnt lgkmcnt(0)')
        a(f'v_max3_f32 v{M}, v{ml}, v{ml+2}, v{ml+4}')
        a(f'v_max3_f32 v{M}, v{M}, v{ml+6}, v{ml+8}')
        a(f'v_max3_f32 v{M}, v{M}, v{ml+10}, v{ml+12}')
        a(f'v_max_f32 v{M}, v{M}, v{ml+14}')
        for w in range(8):
            a(f'v_sub_f32 v{ml+2*w}, v{ml+2*w}, v{M}')
        for w in range(8):
            a(f'v_exp_f32 v{ml+2*w}, v{ml+2*w}')
        a(f'v_mul_f32 v{lsum}, v{ml}, v{ml+1}')
        for w in range(1, 8):
            a(f'v_fma_f32 v{lsum}, v{ml+2*w}, v{ml+2*w+1}, v{lsum}')
        for i in range(4):
            a(f'v_add_f32 v{o+i}, v{d+i}, v{d+4+i}')
            a(f'v_mul_f32 v{o+i}, v{o+i}, v{ml}')
        for w in range(1, 8):
            for i in range(4):
                a(f'v_add_f32 v{d+8*w+i}, v{d+8*w+i}, v{d+8*w+4+i}')
                a(f'v_fma_f32 v{o+i}, v{d+8*w+i}, v{ml+2*w}, v{o+i}')
        a(f's_mul_i32 s3, s2, 3072')
        a(f's_add_u32 s3, s3, {WS_RO}')
        a(f'v_lshlrev_b32 v{ad}, 4, v0')
        a(f'v_add_u32 v{ad}, s3, v{ad}')
        a(f'global_store_dwordx4 v{ad}, v[{o}:{o+3}], {sp(P_WS)} {pol}')
        a(f'v_mul_u32_u24 v{d}, 48, v{b}')
        a(f'v_cmp_eq_u32 vcc, v0, v{d}')
        a(f's_and_saveexec_b64 s[56:57], vcc')
        a(f's_lshl_b32 s3, s2, 5')
        a(f's_add_u32 s3, s3, {WS_RM}')
        a(f'v_lshlrev_b32 v{ad}, 3, v{b}')
        a(f'v_add_u32 v{ad}, s3, v{ad}')
        a(f'global_store_dwordx2 v{ad}, v[{M}:{M+1}], {sp(P_WS)} {pol}')
        a('s_mov_b64 exec, s[56:57]')

    def wo_issue(self, vw):
        a = self.a
        L = V_LANE
        a(f'v_lshrrev_b32 v{vw+24}, 4, v{L}')
        a(f'v_mul_u32_u24 v{vw+24}, 1280, v{vw+24}')
        a(f'v_and_b32 v{vw+25}, 15, v{L}')
        a(f'v_lshlrev_b32 v{vw+25}, 4, v{vw+25}')
        a(f'v_add_u32 v{vw+24}, v{vw+24}, v{vw+25}')
        a(f's_mul_i32 s3, s2, {24*1280}')
        a(f's_lshl_b32 s58, {S_WAVE}, 8')
        a('s_add_u32 s3, s3, s58')
        a(f'v_add_u32 v{vw+24}, s3, v{vw+24}')
        for t in range(6):
            a(f'global_load_dwordx4 v[{vw+4*t}:{vw+4*t+3}], v{vw+24}, {sp(P_WO)}')
            if t < 5:
                a(f'v_add_u32 v{vw+24}, 5120, v{vw+24}')
    def hop1_gather(self, vt, pol=''):
        a = self.a
        i_ = vt; r = vt + 1; b = vt + 2; q6 = vt + 3; ad = vt + 4; ad2 = vt + 5
        ml = vt + 6
        o = vt + 8
        t0 = vt + 12; t1 = vt + 13; t2 = vt + 14; t3 = vt + 15
        a(f'v_and_b32 v{i_}, 7, v0')
        a(f'v_lshrrev_b32 v{r}, 3, v0')
        a(f'v_mul_u32_u24 v{b}, 43, v{r}')
        a(f'v_lshrrev_b32 v{b}, 8, v{b}')
        a(f'v_mul_u32_u24 v{q6}, 6, v{b}')
        a(f'v_sub_u32 v{q6}, v{r}, v{q6}')
        a(f'v_mul_u32_u24 v{ad}, 3072, v{i_}')
        a(f'v_mul_u32_u24 v{t0}, 768, v{b}')
        a(f'v_add_u32 v{ad}, v{ad}, v{t0}')
        a(f'v_lshlrev_b32 v{t0}, 4, v{q6}')
        a(f'v_add_u32 v{ad}, v{ad}, v{t0}')
        a(f's_mul_i32 s3, {S_H}, {8*3072}')
        a(f's_mul_i32 s58, {S_J}, 96')
        a('s_add_u32 s3, s3, s58')
        a(f's_add_u32 s3, s3, {WS_RO}')
        a(f'v_add_u32 v{ad}, s3, v{ad}')
        a(f'v_lshlrev_b32 v{ad2}, 5, v{i_}')
        a(f'v_lshlrev_b32 v{t0}, 3, v{b}')
        a(f'v_add_u32 v{ad2}, v{ad2}, v{t0}')
        a(f's_lshl_b32 s3, {S_H}, 8')
        a(f's_add_u32 s3, s3, {WS_RM}')
        a(f'v_add_u32 v{ad2}, s3, v{ad2}')
        a(f'global_load_dwordx4 v[{o}:{o+3}], v{ad}, {sp(P_WS)} {pol}')
        a(f'global_load_dwordx2 v[{ml}:{ml+1}], v{ad2}, {sp(P_WS)} {pol}')
        a('s_waitcnt vmcnt(0)')
        a(f'v_mov_b32 v{t0}, v{ml}')
        for m in ('quad_perm:[1,0,3,2]', 'quad_perm:[2,3,0,1]', 'row_half_mirror'):
            a(f'v_max_f32_dpp v{t0}, v{t0}, v{t0} {m} row_mask:0xf bank_mask:0xf')
        a(f'v_sub_f32 v{t0}, v{ml}, v{t0}')
        a(f'v_exp_f32 v{t0}, v{t0}')
        a(f'v_mul_f32 v{t1}, v{t0}, v{ml+1}')
        for i in range(4):
            a(f'v_mul_f32 v{o+i}, v{o+i}, v{t0}')
        for m in ('quad_perm:[1,0,3,2]', 'quad_perm:[2,3,0,1]', 'row_half_mirror'):
            for v in (t1, o, o + 1, o + 2, o + 3):
                a(f'v_add_f32_dpp v{v}, v{v}, v{v} {m} row_mask:0xf bank_mask:0xf')
        a(f'v_rcp_f32 v{t0}, v{t1}')
        for i in range(4):
            a(f'v_mul_f32 v{t2}, v{o+i}, v{t0}')
            a(f'v_fma_f32 v{t3}, -v{t2}, v{t1}, v{o+i}')
            a(f'v_fma_f32 v{o+i}, v{t3}, v{t0}, v{t2}')
            a(f'v_cvt_pk_bf16_f32 v{o+i}, v{o+i}, v{o+i}')
        a(f'v_mul_u32_u24 v{ad}, 96, v{b}')
        a(f'v_lshlrev_b32 v{t0}, 4, v{q6}')
        a(f'v_add_u32 v{ad}, v{ad}, v{t0}')
        a(f'v_cmp_eq_u32 vcc, 0, v{i_}')
        a(f's_and_saveexec_b64 s[56:57], vcc')
        a(f'ds_write_b128 v{ad}, v[{o}:{o+3}] offset:{L_ON}')
        a('s_mov_b64 exec, s[56:57]')

    def final(self, S_R, vt, pol=''):
        a = self.a
        L = V_LANE
        a(f's_mul_i32 s58, {S_R}, 3277')
        a('s_lshr_b32 s58, s58, 16')
        a('s_mul_i32 s59, s58, 20')
        a(f's_sub_u32 s59, {S_R}, s59')
        a('s_mul_i32 s60, s58, 2560')
        a('s_lshl_b32 s61, s59, 7')
        a('s_add_u32 s60, s60, s61')
        a('s_mov_b32 s62, s58')
        a('s_mov_b32 s63, s59')
        ad = vt; t0 = vt + 1
        d = vt + 4
        f = vt + 20
        if self.cfg.get('fused'):
            a('s_lshr_b32 s58, s63, 2')
            a(f'v_lshrrev_b32 v{ad}, 3, v{L}')
            a(f'v_lshlrev_b32 v{ad}, 8, v{ad}')
            a(f'v_and_b32 v{t0}, 7, v{L}')
            a(f'v_lshlrev_b32 v{t0}, 2, v{t0}')
            a(f'v_add_u32 v{ad}, v{ad}, v{t0}')
            a(f's_lshl_b32 s3, {S_WAVE}, 5')
            a('s_lshl_b32 s59, s58, 10')
            a('s_add_u32 s3, s3, s59')
            a(f's_add_u32 s3, s3, {WS_F2}')
            a(f'v_add_u32 v{ad}, s3, v{ad}')
            a(f's_lshl_b32 s3, {S_WAVE}, 5')
            a('s_lshl_b32 s59, s58, 7')
            a('s_add_u32 s3, s3, s59')
            a(f's_add_u32 s3, s3, {WS_FF}')
            a(f'v_add_u32 v{t0}, s3, v{t0}')
            a(f'v_cmp_gt_u32 vcc, 32, v{L}')
            a(f'v_cndmask_b32 v{ad}, v{t0}, v{ad}, vcc')
            w3 = self.lab('fw3'); wd = self.lab('fwd')
            a(f's_cmp_ge_u32 {S_WAVE}, 3')
            a(f's_cbranch_scc1 {w3}')
            self.flag_wait(ad, vt + 2, 0xffffffff, 0xff)
            a(f's_branch {wd}')
            a.label(w3)
            self.flag_wait(ad, vt + 2, 0xffffffff, 0)
            a.label(wd)
        a(f'v_lshrrev_b32 v{ad}, 3, v{L}')
        a(f's_lshl_b32 s3, {S_WAVE}, 3')
        a(f'v_add_u32 v{ad}, s3, v{ad}')
        a(f'v_mul_u32_u24 v{ad}, 10240, v{ad}')
        a(f'v_and_b32 v{t0}, 7, v{L}')
        a(f'v_lshlrev_b32 v{t0}, 4, v{t0}')
        a(f'v_add_u32 v{ad}, v{ad}, v{t0}')
        a(f'v_add_u32 v{ad}, s60, v{ad}')
        a(f'v_add_u32 v{t0}, {WS_Y}, v{ad}')
        for k in range(4):
            a(f'global_load_dwordx4 v[{d+4*k}:{d+4*k+3}], v{t0}, {sp(P_WS)} {pol}')
            if k < 3:
                a(f'v_add_u32 v{t0}, {64*10240}, v{t0}')
        for i in range(4):
            a(f'v_mov_b32 v{f+i}, 0')
        sk = self.lab('fin_noffn')
        a(f's_cmp_ge_u32 {S_WAVE}, 3')
        a(f's_cbranch_scc1 {sk}')
        a(f'v_add_u32 v{t0}, {WS_YF}, v{ad}')
        a(f'global_load_dwordx4 v[{f}:{f+3}], v{t0}, {sp(P_WS)} {pol}')
        a.label(sk)
        a('s_waitcnt vmcnt(0)')
        for i in range(4):
            a(f'v_add_f32 v{d+i}, v{d+i}, v{d+4+i}')
            a(f'v_add_f32 v{d+8+i}, v{d+8+i}, v{d+12+i}')
        for i in range(4):
            a(f'v_add_f32 v{d+i}, v{d+i}, v{d+8+i}')
        for i in range(4):
            a(f'v_add_f32_dpp v{d+i}, v{d+i}, v{d+i} row_ror:8 row_mask:0xf bank_mask:0xf')
            a(f'v_add_f32_dpp v{f+i}, v{f+i}, v{f+i} row_ror:8 row_mask:0xf bank_mask:0xf')
        a(f'v_lshrrev_b32 v{ad}, 4, v{L}')
        a(f's_lshl_b32 s3, {S_WAVE}, 2')
        a(f'v_add_u32 v{ad}, s3, v{ad}')
        a(f'v_lshlrev_b32 v{ad}, 7, v{ad}')
        a(f'v_and_b32 v{t0}, 7, v{L}')
        a(f'v_lshlrev_b32 v{t0}, 4, v{t0}')
        a(f'v_add_u32 v{ad}, v{ad}, v{t0}')
        a('s_mov_b32 exec_lo, 0x00ff00ff')
        a('s_mov_b32 exec_hi, 0x00ff00ff')
        a(f'ds_write_b128 v{ad}, v[{d}:{d+3}] offset:{L_RED}')
        a(f'ds_write_b128 v{ad}, v[{f}:{f+3}] offset:{L_RED+4096}')
        self.exec_all()
        a('s_waitcnt lgkmcnt(0)')
        a('s_barrier')
        dn = self.lab('fin_done')
        a(f's_cmp_lg_u32 {S_WAVE}, 0')
        a(f's_cbranch_scc1 {dn}')
        a(f'v_and_b32 v{ad}, 31, v{L}')
        a(f'v_lshlrev_b32 v{ad}, 2, v{ad}')
        a(f'v_lshrrev_b32 v{t0}, 5, v{L}')
        a(f'v_lshlrev_b32 v{t0}, 12, v{t0}')
        a(f'v_add_u32 v{ad}, v{ad}, v{t0}')
        dd = vt + 24
        for k in range(32):
            a(f'ds_read_b32 v{dd+k}, v{ad} offset:{L_RED + 128*k}')
        xv = vt + 2
        a(f'v_and_b32 v{t0}, 31, v{L}')
        a(f'v_lshlrev_b32 v{t0}, 1, v{t0}')
        a('s_mul_i32 s3, s62, 1280')
        a('s_lshl_b32 s58, s63, 6')
        a('s_add_u32 s3, s3, s58')
        a(f'v_add_u32 v{t0}, s3, v{t0}')
        a(f'global_load_ushort v{xv}, v{t0}, {sp(P_X)}')
        a('s_waitcnt lgkmcnt(0)')
        for step in (16, 8, 4, 2, 1):
            for k in range(step):
                a(f'v_add_f32 v{dd+k}, v{dd+k}, v{dd+k+step}')
        self.round_bf16(dd)
        g = dd + 1; s_ = dd; e = dd + 2; r = dd + 3
        a(f'v_mov_b32 v{g}, v{dd}')
        a(f'v_mov_b32 v{e}, v{dd}')
        a(f'v_permlane32_swap_b32 v{g}, v{e}')
        a(f'v_mov_b32 v{s_}, v{g}')
        a(f'v_mov_b32 v{g}, v{e}')
        a(f'v_mul_f32 v{e}, {hex(f2u(-1.4426950408889634))}, v{g}')
        a(f'v_exp_f32 v{e}, v{e}')
        a(f'v_add_f32 v{e}, 1.0, v{e}')
        self.fdiv(r, g, e, dd + 4, dd + 5)
        self.round_bf16(r)
        a(f'v_mul_f32 v{r}, v{s_}, v{r}')
        self.round_bf16(r)
        a('s_waitcnt vmcnt(0)')
        a(f'v_lshlrev_b32 v{xv}, 16, v{xv}')
        a(f'v_add_f32 v{r}, v{xv}, v{r}')
        a(f'v_cvt_pk_bf16_f32 v{r}, v{r}, v{r}')
        self.exec_lo32()
        a(f'global_store_short v{t0}, v{r}, {sp(P_OUT)}')
        self.exec_all()
        a.label(dn)

    def epoch_issue(self, v):
        a = self.a
        a(f'v_mov_b32 v{v}, {WS_EPOCH}')
        a(f'global_load_dword v{v}, v{v}, {sp(P_WS)} sc1')
    def epoch_finish(self, v):
        a = self.a
        a(f'v_readfirstlane_b32 {S_TAG}, v{v}')
        a(f's_add_u32 {S_TAG}, {S_TAG}, 1')
    def flag_set(self, soff, vt):
        a = self.a
        a(f'v_mov_b32 v{vt}, {soff}')
        a(f'v_mov_b32 v{vt+1}, {S_TAG}')
        a('s_mov_b64 exec, 1')
        a(f'global_store_dword v{vt}, v{vt+1}, {sp(P_WS)} sc1')
        self.exec_all()
    def flag_wait(self, vaddr, vt, mask_lo, mask_hi):
        a = self.a
        lp = self.lab('poll'); dn = self.lab('polled')
        a(f's_mov_b32 s56, {hex(mask_lo)}')
        a(f's_mov_b32 s57, {hex(mask_hi)}')
        a('s_mov_b32 s3, 0x40000')
        a('s_mov_b64 exec, s[56:57]')
        a.label(lp)
        a(f'global_load_dword v{vt}, v{vaddr}, {sp(P_WS)} sc1')
        a('s_waitcnt vmcnt(0)')
        a(f'v_cmp_eq_u32 vcc, {S_TAG}, v{vt}')
        a('s_cmp_eq_u64 vcc, s[56:57]')
        a(f's_cbranch_scc1 {dn}')
        a('s_sub_u32 s3, s3, 1')
        a(f's_cbranch_scc0 {lp}')
        a.label(dn)
        self.exec_all()
    def group_flag_wait(self, base, vt):
        a = self.a
        a(f's_lshl_b32 s3, {S_H}, 7')
        a(f's_add_u32 s3, s3, {base}')
        a(f'v_lshlrev_b32 v{vt}, 2, v{V_LANE}')
        a(f'v_add_u32 v{vt}, s3, v{vt}')
        self.flag_wait(vt, vt + 1, 0x77777777, 0)
    def group_flag_set(self, base, vt):
        a = self.a
        a(f's_lshl_b32 s3, s2, 4')
        a(f's_lshl_b32 s58, {S_WAVE}, 2')
        a('s_add_u32 s3, s3, s58')
        a(f's_add_u32 s3, s3, {base}')
        self.flag_set('s3', vt)

    def ring_first(self):
        a = self.a
        a(f's_lshl_b32 s60, {S_J}, 3')
        a(f's_add_u32 s60, s60, {S_WAVE}')
        self.chunk_decode('s60')
        self.block_off()
        a(f's_mov_b32 {self.S_BCUR}, {self.S_BNXT}')
        a(f's_add_u32 {self.S_BLK}, {self.S_BLK}, 1')
        a(f's_sub_u32 {self.S_REM}, {self.S_REM}, 1')
    def ring_unit(self, u):
        if u < self.N: self.kv_loads(self.V_K + 12 * u, 4, u)
        else: self.kv_loads(self.V_V + 12 * (u - self.N), 8, u - self.N)

    def kd(self, name, nv, lds_static=0):
        a = self.a
        nv = (nv + 7) // 8 * 8
        a.raw('.p2align 6')
        a.raw(f'.amdhsa_kernel {name}')
        a.raw(f'  .amdhsa_next_free_vgpr {nv}')
        a.raw('  .amdhsa_next_free_sgpr 100')
        a.raw(f'  .amdhsa_accum_offset {nv}')
        a.raw('  .amdhsa_group_segment_fixed_size 0')
        a.raw('  .amdhsa_kernarg_size 96')
        a.raw('  .amdhsa_user_sgpr_count 2')
        a.raw('  .amdhsa_user_sgpr_kernarg_segment_ptr 1')
        a.raw('  .amdhsa_system_sgpr_workgroup_id_x 1')
        a.raw('.end_amdhsa_kernel')

def wave_skip(g, cond_op, val):
    lab = g.lab('ws')
    g.a(f'{cond_op} {S_WAVE}, {val}')
    g.a(f's_cbranch_scc1 {lab}')
    return lab

def build_multi(cfg):
    g = Gen(cfg); a = g.a
    hdr = []
    hdr.append(f'; @launch kernel=k1_kernel grid=(256,1,1) block=(512,1,1) lds={LDS_SIZE}')
    hdr.append(f'; @launch kernel=k2_kernel grid=(256,1,1) block=(512,1,1) lds={LDS_SIZE}')
    hdr.append(f'; @launch kernel=k3_kernel grid=(256,1,1) block=(512,1,1) lds={LDS_SIZE}')
    hdr.append(f'; @launch kernel=k4_kernel grid=(80,1,1) block=(512,1,1) lds={LDS_SIZE}')
    a.raw('.amdgcn_target "amdgcn-amd-amdhsa--gfx950"')
    a.raw('.text')
    g.prologue('k1_kernel', 256)
    l1 = wave_skip(g, 's_cmp_ge_u32', 4); g.ln_issue(16); a.label(l1)
    l2 = wave_skip(g, 's_cmp_ge_u32', 6); g.qpart_issue(24); a.label(l2)
    l3 = wave_skip(g, 's_cmp_ge_u32', 4); a('s_waitcnt vmcnt(5)'); g.ln_compute(16, 48); a('s_waitcnt lgkmcnt(0)'); a.label(l3)
    l4 = wave_skip(g, 's_cmp_lg_u32', 7)
    a(f's_cmp_lg_u32 {S_J}, 0'); a(f's_cbranch_scc1 {l4}')
    a(f's_lshl_b32 s3, {S_H}, 8'); a(f's_add_u32 s3, s3, {WS_CNT}')
    a('v_mov_b32 v2, s3'); a('v_mov_b32 v3, 0')
    a('s_mov_b64 exec, 1'); a(f'global_store_dword v2, v3, {sp(P_WS)}'); g.exec_all()
    a.label(l4)
    a('s_barrier')
    l5 = wave_skip(g, 's_cmp_ge_u32', 6); g.qpart_compute(24, 48); a('s_waitcnt lgkmcnt(0)'); a.label(l5)
    a('s_barrier')
    l6 = wave_skip(g, 's_cmp_ge_u32', 3); g.qpart_publish(48); a.label(l6)
    g.epilogue()
    g.prologue('k2_kernel', 256)
    g.stamp(0)
    g.main_setup()
    noffn = g.lab('noffn'); ffn_done = g.lab('ffn_done')
    a(f's_and_b32 s3, {S_H}, 7'); a(f's_cmp_lg_u32 s3, {S_J}'); a(f's_cbranch_scc1 {noffn}')
    a(f's_cmp_ge_u32 {S_H}, 24'); a(f's_cbranch_scc1 {noffn}')
    l1 = wave_skip(g, 's_cmp_ge_u32', 4); g.ln_issue(16); a('s_waitcnt vmcnt(0)'); g.ln_compute(16, 48); a('s_waitcnt lgkmcnt(0)'); a.label(l1)
    a('s_barrier')
    g.ffn(S_H, 64, 128, 208 - 64 + 64)
    a('s_waitcnt vmcnt(0)')
    g.main_setup()
    a.label(noffn)
    l2 = wave_skip(g, 's_cmp_ge_u32', 3); g.qgather_issue(160); a.label(l2)
    g.ring_start()
    g.slot_zero()
    l2 = wave_skip(g, 's_cmp_ge_u32', 3); g.qgather_finish(160, 24); a.label(l2)
    a('s_waitcnt lgkmcnt(0)')
    a('s_barrier')
    g.slot_minit()
    a('s_waitcnt lgkmcnt(0)')
    a('s_barrier')
    g.stamp_sync(1)
    g.main_loop()
    a('s_barrier')
    g.stamp(2)
    g.stamp_deferred()
    l3 = wave_skip(g, 's_cmp_ge_u32', 3); g.wg_combine(48); a.label(l3)
    a('s_waitcnt vmcnt(0)')
    g.stamp(3)
    g.epilogue()
    g.prologue('k3_kernel', 256)
    l1 = wave_skip(g, 's_cmp_ge_u32', 5); g.wo_issue(64); a.label(l1)
    l2 = wave_skip(g, 's_cmp_ge_u32', 3); g.hop1_gather(16); a('s_waitcnt lgkmcnt(0)'); a.label(l2)
    a('s_barrier')
    l3 = wave_skip(g, 's_cmp_ge_u32', 5)
    g.proj_tile(64, 6, L_ON, 24, 96)
    a(f's_mul_i32 s3, s2, 10240'); a(f's_add_u32 s3, s3, {WS_Y}')
    g.proj_store(96, '')
    a.label(l3)
    g.epilogue()
    g.prologue('k4_kernel', 80)
    g.final('s2', 16)
    g.epilogue()
    a.raw('.section .rodata,"a"')
    g.kd('k1_kernel', 128); g.kd('k2_kernel', 256); g.kd('k3_kernel', 160); g.kd('k4_kernel', 96)
    return '\n'.join(hdr) + '\n' + '\n'.join(insert_nops(a.lines)) + '\n'

def build_fused(cfg):
    cfg['fused'] = True
    g = Gen(cfg); a = g.a
    HP = 'sc1'
    hdr = [f'; @launch grid=(256,1,1) block=(512,1,1) lds={LDS_SIZE}']
    a.raw('.amdgcn_target "amdgcn-amd-amdhsa--gfx950"')
    a.raw('.text')
    g.prologue(KN, 256)
    g.stamp_sync_i(0)
    V_E = 44
    g.epoch_issue(V_E)
    l = wave_skip(g, 's_cmp_ge_u32', 4); g.ln_issue(16); a.label(l)
    l = wave_skip(g, 's_cmp_ge_u32', 6); g.qpart_issue(24); a.label(l)
    g.main_setup()
    l4 = wave_skip(g, 's_cmp_lg_u32', 7)
    a(f's_cmp_lg_u32 {S_J}, 0'); a(f's_cbranch_scc1 {l4}')
    a('s_mov_b64 exec, 1'); a(f'global_store_dword v{g.V_ZERO}, v{g.V_ZERO}, s[{g.S_CNT}:{g.S_CNT+1}] sc1'); g.exec_all()
    a('s_waitcnt vmcnt(0)')
    a.label(l4)
    a(f's_and_b32 s3, {S_H}, 7')
    a(f's_cmp_eq_u32 s3, {S_J}')
    a('s_cselect_b32 s51, 1, 0')
    a(f's_cmp_lt_u32 {S_H}, 24')
    a('s_cselect_b32 s51, s51, 0')
    g.ring_first()
    cold = g.lab('cold');
    nr = g.lab('nr')
    a('s_cmp_eq_u32 s51, 1'); a(f's_cbranch_scc1 {nr}')
    g.ring_unit(0); g.ring_unit(1)
    a.label(nr)
    l = wave_skip(g, 's_cmp_ge_u32', 4)
    lf = g.lab('lnf'); lg = g.lab('lng')
    a('s_cmp_eq_u32 s51, 1'); a(f's_cbranch_scc1 {lf}')
    a('s_waitcnt vmcnt(11)'); a(f's_branch {lg}')
    a.label(lf); a('s_waitcnt vmcnt(5)'); a.label(lg)
    g.ln_compute(16, 48); a('s_waitcnt lgkmcnt(0)'); a.label(l)
    a('s_barrier')
    l67 = g.lab('w67'); lq = g.lab('qd')
    a(f's_cmp_ge_u32 {S_WAVE}, 6'); a(f's_cbranch_scc1 {l67}')
    g.cfg['qpart_vm'] = False
    lf = g.lab('qf'); lg = g.lab('qg')
    a('s_cmp_eq_u32 s51, 1'); a(f's_cbranch_scc1 {lf}')
    a('s_waitcnt vmcnt(6)'); a(f's_branch {lg}')
    a.label(lf); a('s_waitcnt vmcnt(0)'); a.label(lg)
    g.qpart_compute(24, 160); a('s_waitcnt lgkmcnt(0)')
    a(f's_branch {lq}')
    a.label(l67)
    a.label(lq)
    a('s_barrier')
    g.stamp_sync_i(1)
    a('s_waitcnt vmcnt(0)')
    g.epoch_finish(V_E)
    l = wave_skip(g, 's_cmp_ge_u32', 3)
    g.qpart_publish(160, HP)
    a('s_waitcnt vmcnt(0)')
    g.group_flag_set(WS_FQ, 160)
    a.label(l)
    noffn = g.lab('noffn'); joinq = g.lab('joinq')
    a('s_cmp_eq_u32 s51, 0'); a(f's_cbranch_scc1 {noffn}')
    g.ffn(S_H, 64, 128, 208, HP)
    l = wave_skip(g, 's_cmp_ge_u32', 5)
    a('s_waitcnt vmcnt(0)')
    a(f's_lshl_b32 s3, {S_WAVE}, 7'); a(f's_lshl_b32 s58, {S_H}, 2'); a('s_add_u32 s3, s3, s58'); a(f's_add_u32 s3, s3, {WS_FF}')
    g.flag_set('s3', 208)
    a.label(l)
    g.main_setup()
    g.block_off_cur()
    g.ring_unit(0); g.ring_unit(1)
    a.label(noffn)
    lw = g.lab('w012'); lj = g.lab('filled')
    a(f's_cmp_lt_u32 {S_WAVE}, 3'); a(f's_cbranch_scc1 {lw}')
    l = wave_skip(g, 's_cmp_ge_u32', 5); g.wo_issue(160); a.label(l)
    for u in range(2, 8):
        a('s_waitcnt vmcnt(3)')
        g.ring_unit(u)
    a(f's_branch {lj}')
    a.label(lw)
    g.group_flag_wait(WS_FQ, 192)
    g.qgather_issue(192, HP)
    g.qgather_finish(192, 0)
    g.wo_issue(160)
    for u in range(2, 8):
        g.ring_unit(u)
    a.label(lj)
    g.slot_zero()
    a('s_waitcnt lgkmcnt(0)')
    a('s_barrier')
    g.slot_minit()
    a('s_waitcnt lgkmcnt(0)')
    a('s_barrier')
    g.stamp_sync_i(2)
    g.main_loop()
    a('s_barrier')
    g.stamp_sync_i(3)
    l = wave_skip(g, 's_cmp_ge_u32', 3)
    g.wg_combine(48, HP)
    a('s_waitcnt vmcnt(0)')
    g.group_flag_set(WS_F1, 48)
    g.group_flag_wait(WS_F1, 48)
    g.hop1_gather(48, HP)
    a('s_waitcnt lgkmcnt(0)')
    a.label(l)
    a('s_barrier')
    g.stamp_sync_i(4)
    l = wave_skip(g, 's_cmp_ge_u32', 5)
    g.proj_tile(160, 6, L_ON, 24, 64)
    a(f's_mul_i32 s3, s2, 10240'); a(f's_add_u32 s3, s3, {WS_Y}')
    g.proj_store(64, HP)
    a('s_waitcnt vmcnt(0)')
    a(f's_lshl_b32 s3, {S_WAVE}, 10'); a('s_lshl_b32 s58, s2, 2'); a('s_add_u32 s3, s3, s58'); a(f's_add_u32 s3, s3, {WS_F2}')
    g.flag_set('s3', 64)
    a.label(l)
    g.stamp_sync_i(5)
    fin = g.lab('nofinal')
    a('s_cmp_ge_u32 s2, 80'); a(f's_cbranch_scc1 {fin}')
    g.final('s2', 16, HP)
    a('s_cmp_lg_u32 s2, 0'); a(f's_cbranch_scc1 {fin}')
    a(f's_cmp_lg_u32 {S_WAVE}, 0'); a(f's_cbranch_scc1 {fin}')
    a(f's_mov_b32 s3, {WS_EPOCH}')
    g.flag_set('s3', 16)
    a.label(fin)
    g.stamp_sync_i(6)
    g.stamp_dump(7)
    g.epilogue()
    a.raw('.section .rodata,"a"')
    g.kd(KN, 256)
    return '\n'.join(hdr) + '\n' + '\n'.join(insert_nops(a.lines)) + '\n'

if __name__ == '__main__':
    ap = argparse.ArgumentParser()
    ap.add_argument('-o', required=True)
    ap.add_argument('--mode', default='multi')
    ap.add_argument('--big', type=int, default=4)
    ap.add_argument('--frac', type=float, default=0.875)
    ap.add_argument('--stamps', type=int, default=0)
    args = ap.parse_args()
    cfg = dict(big=args.big, frac=args.frac, stamps=args.stamps)
    if args.mode == 'multi':
        open(args.o, 'w').write(build_multi(cfg))
    else:
        open(args.o, 'w').write(build_fused(cfg))
```
